```python
import torch

def _softmax(x, axis=-1):
    return torch.softmax(x, dim=axis)
def _gelu(x):
    return torch.nn.functional.gelu(x, approximate="tanh")
def _silu(x):
    return torch.nn.functional.silu(x)
def _sigmoid(x):
    return torch.sigmoid(x)
def _layernorm(x, axis=-1, eps=1e-5):
    m = x.mean(dim=axis, keepdim=True)
    v = x.var(dim=axis, keepdim=True, unbiased=False)
    return (x - m) / torch.sqrt(v + eps)
def _scatter_add(tgt, idx, src, axis=0):
    return tgt.clone().index_add_(axis, idx, src)
def _segment_sum(src, seg, n):
    out = torch.zeros((n,) + src.shape[1:], dtype=src.dtype)
    return out.index_add_(0, seg, src)
def _pad(x, pw):
    flat = tuple(v for pair in reversed(pw) for v in pair)
    return torch.nn.functional.pad(x, flat)

kernel_name = 'parallel_sum__spectral_fnet__geglu_ffn__prompt'

def setup_inputs():

    _w = (lambda a: (lambda t: t.to(torch.bfloat16) if t.is_floating_point() else t)(torch.as_tensor(a)))
    def _A_setup():
        B, S, D = 1, 2048, 512
        ns = torch.arange(S)[:, None] * torch.arange(S)[None, :]
        nd = torch.arange(D)[:, None] * torch.arange(D)[None, :]
        Ws_re = torch.cos(-2.0 * torch.pi * ns / S).to(float)
        Ws_im = torch.sin(-2.0 * torch.pi * ns / S).to(float)
        Wd_re = torch.cos(-2.0 * torch.pi * nd / D).to(float)
        Wd_im = torch.sin(-2.0 * torch.pi * nd / D).to(float)
        return {
            "x": _w((lambda *s: torch.randn(*s, dtype=torch.bfloat16) * 0.05)(B, S, D)),
            "dft_seq_re": _w(Ws_re),
            "dft_seq_im": _w(Ws_im),
            "dft_hid_re": _w(Wd_re),
            "dft_hid_im": _w(Wd_im),
        }
    _A_in = _A_setup()

    def _B_setup():
        B, S, D, F = 1, 2048, 512, 1792
        return {
            "x": _w((lambda *s: torch.randn(*s, dtype=torch.bfloat16) * 0.05)(B, S, D)),
            "w_gate": _w((lambda *s: torch.randn(*s, dtype=torch.bfloat16) * 0.2)(D, F)),
            "w_up": _w((lambda *s: torch.randn(*s, dtype=torch.bfloat16) * 0.2)(D, F)),
            "w_down": _w((lambda *s: torch.randn(*s, dtype=torch.bfloat16) * 0.2)(F, D)),
        }
    _B_in = _B_setup()

    return {
        "A_x": _A_in["x"],
        "A_dft_seq_re": _A_in["dft_seq_re"],
        "A_dft_seq_im": _A_in["dft_seq_im"],
        "A_dft_hid_re": _A_in["dft_hid_re"],
        "A_dft_hid_im": _A_in["dft_hid_im"],
        "B_x": _B_in["x"],
        "B_w_gate": _B_in["w_gate"],
        "B_w_up": _B_in["w_up"],
        "B_w_down": _B_in["w_down"],
    }

def reference(A_x, A_dft_seq_re, A_dft_seq_im, A_dft_hid_re, A_dft_hid_im, B_x, B_w_gate, B_w_up, B_w_down):
    def _A_ref(x, dft_seq_re, dft_seq_im, dft_hid_re, dft_hid_im):
        a = torch.einsum("bsd,ed->bse", x, dft_hid_re)
        b = torch.einsum("bsd,ed->bse", x, dft_hid_im)
        y = torch.einsum("ts,bse->bte", dft_seq_re, a) - torch.einsum("ts,bse->bte", dft_seq_im, b)
        return y

    def _B_ref(x, w_gate, w_up, w_down):
        return (_gelu(x @ w_gate) * (x @ w_up)) @ w_down

    x = A_x
    xn = _layernorm(x, axis=-1)
    return x + _A_ref(xn, A_dft_seq_re, A_dft_seq_im, A_dft_hid_re, A_dft_hid_im) + _B_ref(xn, B_w_gate, B_w_up, B_w_down)
```

```python
HDR = '.amdgcn_target "amdgcn-amd-amdhsa--gfx950"\n.text\n'

def kd(name, vgpr, sgpr=102, acc=None):
    if acc is None:
        acc = (min(vgpr, 256) + 3) // 4 * 4
    return f""".p2align 6
.amdhsa_kernel {name}
  .amdhsa_next_free_vgpr {vgpr}
  .amdhsa_next_free_sgpr {sgpr}
  .amdhsa_accum_offset {acc}
  .amdhsa_group_segment_fixed_size 0
  .amdhsa_kernarg_size 96
  .amdhsa_user_sgpr_count 2
  .amdhsa_user_sgpr_kernarg_segment_ptr 1
  .amdhsa_system_sgpr_workgroup_id_x 1
.end_amdhsa_kernel
"""

def kern(name, body):
    return f".globl {name}\n.p2align 8\n.type {name},@function\n{name}:\n{body}\n s_endpgm\n"

def module(launches, kernels, header=""):
    out = header
    out += "".join(f"; @launch kernel={k} grid=({g},1,1) block=({b},1,1) lds={l}\n" for k, g, b, l in launches)
    out += HDR + "".join(kern(n, b) for n, b, _, _ in kernels)
    out += '.section .rodata,"a"\n' + "".join(kd(n, v, 102, a) for n, _, v, a in kernels)
    return out

class Asm:
    def __init__(self):
        self.l = []
    def __call__(self, s):
        for x in s.strip("\n").split("\n"):
            self.l.append(" " + x.strip())
    def label(self, n):
        self.l.append(n + ":")
    def text(self):
        return "\n".join(self.l)
```

```python
import re

REG = re.compile(r'^(-|\|)?([vas])(\d+|\[(\d+):(\d+)\])\|?$')
TRANS = ("v_exp_f32", "v_log_f32", "v_rcp_f32", "v_rsq_f32", "v_sqrt_f32", "v_sin_f32", "v_cos_f32")

def regs(tok):
    tok = tok.strip()
    if tok in ("vcc",): return [("s", 106), ("s", 107)]
    if tok == "m0": return [("s", 124)]
    if tok == "exec": return [("s", 126), ("s", 127)]
    m = REG.match(tok)
    if not m: return []
    f = m.group(2)
    if m.group(4) is not None:
        return [(f, i) for i in range(int(m.group(4)), int(m.group(5)) + 1)]
    return [(f, int(m.group(3)))]

def split_ops(s):
    out, depth, cur = [], 0, ""
    for ch in s:
        if ch in "[(": depth += 1
        if ch in "])": depth -= 1
        if ch == "," and depth == 0:
            out.append(cur.strip()); cur = ""
        else: cur += ch
    if cur.strip(): out.append(cur.strip())
    res = []
    for o in out:
        res.append(o.split()[0] if o.split() else o)
    return res, out

class I:
    pass

def parse(line):
    t = line.split(";")[0].strip()
    if not t or t.endswith(":") or t.startswith("."): return None
    p = t.split(None, 1)
    mn = p[0]; rest = p[1] if len(p) > 1 else ""
    ops, raw = split_ops(rest)
    i = I(); i.mn = mn; i.text = t
    i.w = []; i.r = []
    i.kind = "other"
    R = lambda k: regs(ops[k]) if k < len(ops) else []
    allr = lambda a: [x for k in range(a, len(ops)) for x in regs(ops[k])]
    if mn.startswith("v_mfma"):
        i.kind = "mfma"; i.w = R(0); i.a = R(1) + R(2); i.c = R(3); i.r = i.a + i.c
        i.passes = 8 if "32x32x16" in mn else 4
    elif mn.startswith("v_"):
        i.kind = "valu"
        if mn.startswith("v_cmp"):
            i.w = R(0); i.r = allr(1)
        elif mn.startswith("v_permlane") and "swap" in mn:
            i.w = R(0) + R(1); i.r = R(0) + R(1)
        elif mn.startswith(("v_add_co", "v_sub_co", "v_addc_co", "v_subb_co")):
            i.w = R(0) + R(1); i.r = allr(2)
        else:
            i.w = R(0); i.r = allr(1)
            if mn.startswith(("v_fmac", "v_dot2c", "v_writelane")): i.r += R(0)
            if mn.startswith("v_cndmask") and len(ops) == 3: i.r += regs("vcc")
        i.trans = mn.replace("_e32", "").replace("_e64", "") in TRANS
        i.dpp = ("_dpp" in mn) or ("quad_perm" in t) or ("row_" in t)
        i.perm = mn.startswith("v_permlane")
        i.rl = mn.startswith(("v_readfirstlane", "v_readlane"))
    elif mn.startswith(("buffer_", "global_")):
        i.kind = "vmem"
        i.lds = " lds" in t
        if "store" in mn or "atomic" in mn:
            i.r = allr(0); i.store_data = R(0) if mn.startswith("buffer_") else R(1)
            i.wide = mn.endswith(("x3", "x4"))
        elif mn in ("buffer_inv", "buffer_wbl2"):
            pass
        elif i.lds:
            i.r = allr(0) + regs("m0")
        else:
            i.w = R(0); i.r = allr(1)
    elif mn.startswith("ds_"):
        i.kind = "ds"
        if mn.startswith(("ds_read", "ds_bpermute", "ds_permute", "ds_swizzle")) or "rtn" in mn:
            i.w = R(0); i.r = allr(1)
        else:
            i.r = allr(0)
    elif mn.startswith("s_"):
        i.kind = "salu"
        if mn == "s_nop": i.kind = "nop"; i.n = int(ops[0], 0) + 1
        elif mn.startswith(("s_cmp", "s_cbranch", "s_branch", "s_waitcnt", "s_barrier", "s_endpgm", "s_setprio", "s_sleep", "s_bitcmp")):
            i.r = allr(0)
        else:
            i.w = R(0); i.r = allr(1)
    return i

def fix(lines, verbose=False):
    out = []
    hist = []
    pos = 0
    added = 0
    for line in lines:
        if "hz:barrier" in line:
            hist = []
        i = parse(line)
        if i is None:
            out.append(line); continue
        need = 0
        rs, ws = set(i.r), set(i.w)
        for (p, h) in reversed(hist):
            d = pos - p - 1
            if d >= 20: break
            hw = set(h.w)
            req = 0
            if h.kind == "valu":
                vw = {x for x in hw if x[0] in "va"}
                sw = {x for x in hw if x[0] == "s"}
                if i.kind == "mfma" and vw & rs: req = max(req, 2)
                if i.kind == "valu":
                    if h.trans and not i.trans and vw & rs: req = max(req, 1)
                    if h.trans and i.trans and vw & rs: req = max(req, 1)
                    if (i.dpp or i.perm) and vw & rs: req = max(req, 2)
                    if i.rl and vw & rs: req = max(req, 1)
                    if sw & rs: req = max(req, 4 if i.mn.startswith(("v_readlane", "v_writelane")) else 2)
                if i.kind == "vmem" and sw & rs: req = max(req, 5)
                if i.kind == "salu" and sw & rs: req = max(req, 1)
                if h.trans and i.kind in ("vmem", "ds") and vw & rs: req = max(req, 1)
            elif h.kind == "mfma":
                big = 12 if h.passes == 8 else 8
                mid = 10 if h.passes == 8 else 6
                if i.kind == "mfma":
                    if hw & set(i.a): req = max(req, big)
                    if hw & set(i.c):
                        if not (i.c == h.w and i.passes == h.passes): req = max(req, mid)
                    elif hw & ws: req = max(req, big)
                elif i.kind in ("valu", "vmem", "ds"):
                    if hw & (rs | ws): req = max(req, big)
                    if i.kind == "valu" and set(h.c) & ws: req = max(req, 7 if h.passes == 8 else 3)
            elif h.kind == "salu":
                if ("s", 124) in hw and i.kind == "vmem" and getattr(i, "lds", False): req = max(req, 1)
            elif h.kind == "vmem":
                if getattr(h, "wide", False) and set(h.store_data) & ws:
                    req = max(req, 2 if i.kind == "valu" else 1)
            need = max(need, req - d)
        while need > 0:
            n = min(need, 16)
            out.append(f" s_nop {n-1}")
            pos += n; need -= n; added += 1
            if verbose: print("hz: nop", n, "before", line.strip())
        out.append(line)
        if i.kind == "nop":
            pos += i.n
        else:
            hist.append((pos, i)); pos += 1
            if len(hist) > 64: hist = hist[-40:]
    return out, added
```

```python
import sys, math
from asmlib import Asm, kd, kern, HDR
import hz

H_OFF, H_SZ = 0x0, 32 * 112 * 2 * 1024
WT_OFF, WT_SZ = 0x800000, 8 * 112 * 2 * 1024
Z_OFF, Z_SZ = 0xA00000, 256 * 2 * 4096
Y_OFF, Y_SZ = 0xC00000, 257 * 8192
F_OFF, F_SZ = 0xF00000, 257 * 16
DBG_OFF = 0x1000000

class Cnt:
    def __init__(self, a, name, cap):
        self.a, self.name, self.cap = a, name, cap
        self.n = 0
        self.done = 0
    def issue(self):
        self.n += 1
        return self.n
    def need(self, tok):
        if tok is None or tok <= self.done: return None
        return self.n - tok
    def wait(self, tok):
        k = self.need(tok)
        if k is None: return
        k = min(k, self.cap)
        self.a(f"s_waitcnt {self.name}({k})")
        self.done = max(self.done, self.n - k)
    def mark(self, tok):
        if tok is not None: self.done = max(self.done, tok)

def wait2(a, vm, vt, lg, lt):
    parts = []
    k = vm.need(vt)
    if k is not None:
        k = min(k, vm.cap); parts.append(f"vmcnt({k})"); vm.done = max(vm.done, vm.n - k)
    k = lg.need(lt)
    if k is not None:
        k = min(k, lg.cap); parts.append(f"lgkmcnt({k})"); lg.done = max(lg.done, lg.n - k)
    if parts: a("s_waitcnt " + " ".join(parts))

def interleave(a, main, fill):
    n = len(main); f = len(fill); p = 0
    for i, m in enumerate(main):
        a(m)
        q = (f * (i + 1)) // n
        while p < q:
            a(fill[p]); p += 1

def srd(a, d, lo, hi, size, off=0):
    if off:
        a(f"s_add_u32 s{d}, s{lo}, {off}\ns_addc_u32 s{d+1}, s{hi}, 0")
    else:
        a(f"s_mov_b32 s{d}, s{lo}\ns_mov_b32 s{d+1}, s{hi}")
    a(f"s_mov_b32 s{d+2}, {size}\ns_mov_b32 s{d+3}, 0x20000")

NSLOT, SLOT = 6, 24576
SCR = NSLOT * SLOT
FIN = SCR + 8192
CS = FIN + 2048
K1_LDS = CS + 1024
K0C = -2.0 * math.sqrt(2.0 / math.pi) * math.log2(math.e)
K1C = K0C * 0.044715
def fbits(x):
    import struct
    return "0x%08x" % struct.unpack("<I", struct.pack("<f", x))[0]

def gen_k1(cfg):
    a = Asm()
    mapping = cfg.get("map1", "A"); init = cfg.get("init", 3); stamp = cfg.get("stamp", False)
    a("s_cmp_ge_u32 s2, 256\ns_cbranch_scc1 K1_END")
    a("""s_load_dwordx2 s[4:5], s[0:1], 0
         s_load_dwordx4 s[8:11], s[0:1], 24
         s_load_dwordx4 s[12:15], s[0:1], 48
         s_load_dwordx2 s[16:17], s[0:1], 64
         s_load_dwordx2 s[18:19], s[0:1], 88""")
    if stamp: a("s_memtime s[90:91]\ns_memrealtime s[92:93]")
    a("v_lshrrev_b32 v2, 6, v0\nv_and_b32 v1, 63, v0\ns_mov_b32 s40, 0xffff0000\nv_readfirstlane_b32 s20, v2")
    a("s_and_b32 s21, s2, 7\ns_lshr_b32 s22, s2, 3")
    if mapping == "A":
        a("s_and_b32 s23, s21, 1\ns_lshl_b32 s23, s23, 3\ns_and_b32 s3, s22, 7\ns_add_u32 s23, s23, s3")
        a("s_lshr_b32 s24, s21, 1\ns_lshl_b32 s24, s24, 2\ns_lshr_b32 s3, s22, 3\ns_add_u32 s24, s24, s3")
    else:
        a("s_lshl_b32 s23, s21, 1\ns_and_b32 s3, s22, 1\ns_add_u32 s23, s23, s3\ns_lshr_b32 s24, s22, 1")
    a("s_and_b32 s25, s20, 1\ns_lshr_b32 s26, s20, 1")
    a("s_lshr_b32 s27, s20, 2\ns_and_b32 s28, s20, 3")
    a("""v_and_b32 v20, 3, v1
         v_lshrrev_b32 v21, 2, v1
         v_lshrrev_b32 v22, 4, v1
         v_lshrrev_b32 v23, 5, v1
         v_and_b32 v24, 31, v1""")
    a("s_lshl_b32 s29, s20, 10\ns_lshl_b32 s30, s25, 13\ns_lshl_b32 s3, s26, 11\ns_add_u32 s30, s30, s3\ns_add_u32 s30, s30, 8192")
    a("v_lshlrev_b32 v25, 4, v1\nv_add_u32 v8, s29, v25\nv_add_u32 v11, s30, v25")
    a(f"v_add_u32 v9, {2*SLOT}, v8\nv_add_u32 v10, {4*SLOT}, v8\nv_add_u32 v12, {2*SLOT}, v11\nv_add_u32 v13, {4*SLOT}, v11")
    a("""v_lshrrev_b32 v26, 2, v24
         v_and_b32 v26, 3, v26
         v_xor_b32 v26, v26, v23
         v_lshlrev_b32 v26, 4, v26
         v_lshlrev_b32 v27, 6, v24
         s_lshl_b32 s3, s27, 12
         v_add3_u32 v14, v26, v27, s3
         v_xor_b32 v17, 32, v14""")
    a(f"v_add_u32 v15, {2*SLOT}, v14\nv_add_u32 v16, {4*SLOT}, v14\nv_add_u32 v18, {2*SLOT}, v17\nv_add_u32 v19, {4*SLOT}, v17")
    a("""v_and_b32 v26, 3, v21
         v_lshlrev_b32 v26, 6, v26
         v_and_b32 v27, 1, v22
         v_lshlrev_b32 v27, 5, v27
         v_lshlrev_b32 v28, 3, v20
         v_add3_u32 v26, v26, v27, v28
         v_lshlrev_b32 v27, 9, v23
         s_lshl_b32 s3, s28, 11
         s_add_u32 s3, s3, 8192
         v_add3_u32 v5, v26, v27, s3""")
    a(f"v_add_u32 v6, {2*SLOT}, v5\nv_add_u32 v7, {4*SLOT}, v5")
    a(f"v_lshlrev_b32 v27, 8, v23\ns_add_u32 s3, s29, {SCR}\nv_add3_u32 v29, v26, v27, s3")
    a("v_xor_b32 v30, v20, v22\nv_lshlrev_b32 v30, 4, v30\ns_lshl_b32 s3, s20, 4\nv_add_u32 v31, s3, v21")
    for i in range(152, 164): a(f"v_mov_b32 v{i}, 0")
    a("s_waitcnt lgkmcnt(0)")
    srd(a, 44, 4, 5, 0x200000)
    srd(a, 52, 18, 19, H_SZ, H_OFF)
    a("s_cmp_ge_u32 s24, 14\ns_cbranch_scc1 K1_DFT")

    def main(dft):
        vm = Cnt(a, "vmcnt", 63); lg = Cnt(a, "lgkmcnt", 15)
        stride = 1024 if dft else 3584
        lo0, lo1 = (8, 10) if dft else (12, 14)
        a(f"s_cmp_eq_u32 s25, 0\ns_cselect_b32 s48, s{lo0}, s{lo1}\ns_cselect_b32 s49, s{lo0+1}, s{lo1+1}")
        a(f"s_mov_b32 s50, {524288 if dft else 1835008}\ns_mov_b32 s51, 0x20000")
        if not dft:
            a("s_lshl_b32 s3, s23, 7\nv_add_u32 v2, s3, v31\nv_lshlrev_b32 v2, 10, v2\nv_add_u32 v2, v2, v30")
        else:
            a("""v_lshrrev_b32 v2, 3, v31
                 v_and_b32 v2, 1, v2
                 v_lshlrev_b32 v2, 2, v2
                 v_and_b32 v27, 3, v31
                 v_add_u32 v2, v2, v27
                 v_lshrrev_b32 v27, 4, v31
                 v_lshlrev_b32 v27, 1, v27
                 v_lshrrev_b32 v28, 2, v31
                 v_and_b32 v28, 1, v28
                 v_lshlrev_b32 v2, 5, v2
                 v_add3_u32 v2, v2, v27, v28
                 s_lshr_b32 s3, s23, 1
                 s_lshl_b32 s3, s3, 8
                 s_and_b32 s31, s23, 1
                 s_lshl_b32 s31, s31, 4
                 s_add_u32 s3, s3, s31
                 v_add_u32 v2, s3, v2
                 v_lshlrev_b32 v2, 10, v2
                 v_add_u32 v2, v2, v30""")
        if dft: a("s_sub_u32 s3, s24, 14\ns_lshl_b32 s3, s3, 8")
        else: a("s_lshl_b32 s3, s24, 8")
        a(f"s_lshl_b32 s31, s26, 6\ns_add_u32 s3, s3, s31\ns_mov_b32 s31, {stride}\nv_mul_lo_u32 v3, v21, s31\nv_lshlrev_b32 v27, 4, v20\nv_add3_u32 v3, v3, v27, s3")
        a(f"v_add_u32 v4, {16*stride}, v3")
        wt_tok = None
        if not dft:
            srd(a, 56, 16, 17, 1835008)
            srd(a, 60, 18, 19, WT_SZ, WT_OFF)
            a("s_mul_i32 s32, s23, 14\ns_add_u32 s32, s32, s24\ns_lshr_b32 s33, s32, 1\ns_and_b32 s32, s32, 1\ns_lshl_b32 s32, s32, 3\ns_add_u32 s32, s32, s20")
            a("s_lshl_b32 s34, s33, 14\ns_lshl_b32 s3, s32, 6\ns_add_u32 s34, s34, s3")
            a("v_lshlrev_b32 v28, 10, v21\nv_add_u32 v28, v28, v27")
            a(f"s_add_u32 m0, s29, {SCR}")
            a("s_lshr_b32 s3, s32, 1\ns_mul_i32 s3, s3, 112\ns_add_u32 s3, s3, s33\ns_lshl_b32 s3, s3, 1\ns_and_b32 s35, s32, 1\ns_add_u32 s35, s35, s3\ns_lshl_b32 s35, s35, 10")
            a("buffer_load_dwordx4 v28, s[56:59], s34 offen lds"); wt_tok = vm.issue()
        stage_tok = {}
        def dma(st):
            sl = (st % NSLOT) * SLOT
            a(f"s_add_u32 m0, s29, {sl}\ns_movk_i32 s36, {st*64}\nbuffer_load_dwordx4 v2, s[44:47], s36 offen lds"); vm.issue()
            a(f"s_add_u32 m0, s30, {sl}\ns_mov_b32 s37, {st*32*stride}\nbuffer_load_dwordx4 v3, s[48:51], s37 offen lds"); vm.issue()
            a(f"s_add_u32 m0, s30, {sl+1024}\ns_nop 0\nbuffer_load_dwordx4 v4, s[48:51], s37 offen lds"); stage_tok[st] = vm.issue()
        nxt = 0
        for st in range(init): dma(st); nxt += 1
        def frag_reads(st, ksl, R):
            sl = st % NSLOT; b = sl // 2; o = (sl % 2) * SLOT
            xa = (14, 17)[ksl] + b
            toks = []
            a(f"ds_read_b128 v[{R}:{R+3}], v{xa} offset:{o}"); lg.issue()
            a(f"ds_read_b64_tr_b16 v[{R+8}:{R+9}], v{5+b} offset:{o + ksl*1024}"); lg.issue()
            a(f"ds_read_b64_tr_b16 v[{R+10}:{R+11}], v{5+b} offset:{o + ksl*1024 + 256}"); lg.issue()
            a(f"ds_read_b64_tr_b16 v[{R+12}:{R+13}], v{5+b} offset:{o + 8192 + ksl*1024}"); lg.issue()
            a(f"ds_read_b64_tr_b16 v[{R+14}:{R+15}], v{5+b} offset:{o + 8192 + ksl*1024 + 256}"); lg.issue()
            a(f"ds_read_b128 v[{R+4}:{R+7}], v{xa} offset:{o + 2048}")
            return lg.issue()
        def stat_reads(st):
            sl = st % NSLOT; b = sl // 2; o = (sl % 2) * SLOT
            S = 128 + 12 * (st & 1)
            a(f"ds_read_b128 v[{S}:{S+3}], v{8+b} offset:{o}"); lg.issue()
            a(f"ds_read_b128 v[{S+4}:{S+7}], v{11+b} offset:{o}"); lg.issue()
            a(f"ds_read_b128 v[{S+8}:{S+11}], v{11+b} offset:{o+1024}")
            return lg.issue()
        def stat_valu(st):
            S = 128 + 12 * (st & 1)
            ops = []
            for i in range(4):
                t0, t1 = 164 + 2 * (i & 1), 165 + 2 * (i & 1)
                ops += [f"v_lshlrev_b32 v{t0}, 16, v{S+i}", f"v_and_b32 v{t1}, s40, v{S+i}",
                        f"v_add_f32 v152, v152, v{t0}", f"v_add_f32 v153, v153, v{t1}",
                        f"v_fmac_f32 v154, v{t0}, v{t0}", f"v_fmac_f32 v155, v{t1}, v{t1}"]
            for i in range(8):
                t0, t1 = 168 + 2 * (i & 1), 169 + 2 * (i & 1)
                c = 156 + 2 * (i & 3)
                ops += [f"v_lshlrev_b32 v{t0}, 16, v{S+4+i}", f"v_and_b32 v{t1}, s40, v{S+4+i}",
                        f"v_add_f32 v{c}, v{c}, v{t0}", f"v_add_f32 v{c+1}, v{c+1}, v{t1}"]
            return ops
        def mfmas(R, first):
            out = []
            for rt in range(2):
                for p in range(2):
                    ac = 64 + (rt * 2 + p) * 16
                    x = f"v[{R+4*rt}:{R+4*rt+3}]"; w = f"v[{R+8+4*p}:{R+11+4*p}]"
                    A, B = (x, w) if dft else (w, x)
                    c = "0" if first else f"v[{ac}:{ac+15}]"
                    out.append(f"v_mfma_f32_32x32x16_bf16 v[{ac}:{ac+15}], {A}, {B}, {c}")
            return out
        X, Y = 32, 48
        vm.wait(stage_tok[0]); a("s_barrier")
        if stamp: a("s_memtime s[94:95]")
        if nxt < 16 and cfg.get("init2", 1):
            for _ in range(cfg.get("init2", 1)): dma(nxt); nxt += 1
        xt = frag_reads(0, 0, X); stt = stat_reads(0)
        for s in range(16):
            yt = frag_reads(s, 1, Y)
            lg.wait(stt)
            sv = stat_valu(s)
            half = len(sv) // 2 if s < 15 else len(sv)
            fill = sv[:half]
            if s == 15:
                fill = fill + finalize_stats()
            interleave(a, mfmas(X, s == 0), fill)
            if s == 15: finalize_writes(lg)
            if s == 2 and not dft:
                vm.mark(wt_tok)
                a("ds_read_b64_tr_b16 v[172:173], v29"); lg.issue()
                a("ds_read_b64_tr_b16 v[174:175], v29 offset:512"); lg.issue()
            wait2(a, vm, stage_tok.get(s + 1), lg, lg.n)
            a("s_barrier")
            if s == 2 and not dft:
                a("buffer_store_dwordx4 v[172:175], v25, s[60:63], s35 offen"); vm.issue()
            k = 0
            while nxt < 16 and nxt <= s + NSLOT and k < 2:
                dma(nxt); nxt += 1; k += 1
            if s < 15:
                xt = frag_reads(s + 1, 0, X); stt = stat_reads(s + 1)
                interleave(a, mfmas(Y, False), sv[half:])
            else:
                epi_reads(dft, lg)
                for m in mfmas(Y, False): a(m)
        if stamp: a("s_memtime s[96:97]")
        return vm, lg

    def finalize_stats():
        ops = """v_add_f32 v164, v152, v153
                 v_sub_f32 v165, v152, v153
                 v_add_f32 v166, v154, v155
                 v_permlane32_swap_b32 v156, v160
                 v_permlane32_swap_b32 v157, v161
                 v_permlane32_swap_b32 v158, v162
                 v_permlane32_swap_b32 v159, v163
                 v_add_f32_dpp v164, v164, v164 quad_perm:[1,0,3,2] row_mask:0xf bank_mask:0xf
                 v_add_f32_dpp v165, v165, v165 quad_perm:[1,0,3,2] row_mask:0xf bank_mask:0xf
                 v_add_f32_dpp v166, v166, v166 quad_perm:[1,0,3,2] row_mask:0xf bank_mask:0xf
                 v_add_f32 v156, v156, v160
                 v_add_f32 v157, v157, v161
                 v_add_f32 v158, v158, v162
                 v_add_f32 v159, v159, v163
                 v_add_f32_dpp v164, v164, v164 quad_perm:[2,3,0,1] row_mask:0xf bank_mask:0xf
                 v_add_f32_dpp v165, v165, v165 quad_perm:[2,3,0,1] row_mask:0xf bank_mask:0xf
                 v_add_f32_dpp v166, v166, v166 quad_perm:[2,3,0,1] row_mask:0xf bank_mask:0xf
                 v_permlane16_swap_b32 v156, v158
                 v_permlane16_swap_b32 v157, v159
                 v_mul_f32 v164, 0x3b000000, v164
                 v_mul_f32 v166, 0x3b000000, v166
                 v_add_f32 v156, v156, v158
                 v_add_f32 v157, v157, v159
                 v_fma_f32 v166, -v164, v164, v166
                 v_max_f32 v166, 0, v166
                 v_add_f32_dpp v156, v156, v156 row_ror:4 row_mask:0xf bank_mask:0xf
                 v_add_f32_dpp v157, v157, v157 row_ror:4 row_mask:0xf bank_mask:0xf
                 v_cvt_pk_bf16_f32 v167, v164, v166
                 v_lshlrev_b32 v164, 16, v167
                 v_and_b32 v166, s40, v167
                 v_add_f32_dpp v156, v156, v156 row_ror:8 row_mask:0xf bank_mask:0xf
                 v_add_f32_dpp v157, v157, v157 row_ror:8 row_mask:0xf bank_mask:0xf
                 v_add_f32 v166, 0x3727c5ac, v166
                 v_cvt_pk_bf16_f32 v166, v166, v166
                 v_and_b32 v166, s40, v166
                 v_sqrt_f32 v166, v166
                 v_cmp_eq_u32 vcc, 1, v20
                 v_cvt_pk_bf16_f32 v166, v166, v166
                 v_and_b32 v166, s40, v166
                 v_rcp_f32 v166, v166
                 v_lshlrev_b32 v168, 9, v20
                 v_lshl_add_u32 v168, v31, 2, v168
                 v_mul_f32 v167, v164, v166
                 v_mul_f32 v165, v165, v166
                 v_cndmask_b32 v164, v164, v166, vcc
                 v_cmp_eq_u32 vcc, 2, v20
                 v_lshlrev_b32 v169, 5, v20
                 v_lshl_add_u32 v169, v22, 3, v169
                 v_cndmask_b32 v164, v164, v167, vcc
                 v_cmp_eq_u32 vcc, 3, v20
                 s_lshl_b32 s3, s25, 9
                 s_lshl_b32 s31, s26, 7
                 v_cndmask_b32 v164, v164, v165, vcc
                 s_add_u32 s3, s3, s31
                 v_add_u32 v169, s3, v169"""
        return [x.strip() for x in ops.split("\n")]
    def finalize_writes(lg):
        a(f"ds_write_b32 v168, v164 offset:{FIN}" if FIN < 65536 else f"v_add_u32 v168, {FIN}, v168\nds_write_b32 v168, v164"); lg.issue()
        a(f"v_add_u32 v169, {CS}, v169\nds_write_b64 v169, v[156:157]"); lg.issue()

    def epi_reads(dft, lg):
        if not dft:
            a(f"s_lshl_b32 s3, s28, 7\ns_add_u32 s3, s3, {CS}\nv_lshl_add_u32 v164, v23, 4, s3")
            a(f"s_lshl_b32 s3, s27, 8\ns_add_u32 s3, s3, {FIN}\nv_lshl_add_u32 v165, v24, 2, s3")
            for rt in range(2):
                a(f"ds_read_b32 v{160+rt}, v165 offset:{rt*128}"); lg.issue()
                a(f"ds_read_b32 v{162+rt}, v165 offset:{512+rt*128}"); lg.issue()
            for p in range(2):
                for g in range(4):
                    r = 128 + (p * 4 + g) * 4
                    a(f"ds_read_b128 v[{r}:{r+3}], v164 offset:{p*512+g*32}"); lg.issue()
        else:
            a(f"s_lshl_b32 s3, s28, 7\ns_add_u32 s3, s3, {CS}\nv_lshl_add_u32 v164, v24, 2, s3")
            a(f"s_lshl_b32 s3, s27, 8\ns_add_u32 s3, s3, {FIN}\nv_lshl_add_u32 v165, v23, 4, s3")
            a("ds_read_b32 v160, v164"); lg.issue()
            a("ds_read_b32 v161, v164 offset:512"); lg.issue()
            for arr, base in ((1, 128), (2, 176), (3, 208)):
                for rt in range(2):
                    for g in range(4):
                        r = base + (rt * 4 + g) * 4
                        a(f"ds_read_b128 v[{r}:{r+3}], v165 offset:{arr*512+rt*128+g*32}"); lg.issue()
                        if lg.n - lg.done > 14: lg.wait(lg.n - 6)

    def stamps_out():
        if not stamp: return
        a("s_memtime s[98:99]\ns_waitcnt lgkmcnt(0)")
        a("s_sub_u32 s94, s94, s90\ns_sub_u32 s96, s96, s90\ns_sub_u32 s98, s98, s90")
        srd(a, 44, 18, 19, 65536, DBG_OFF)
        a("v_mov_b32 v10, s92\nv_mov_b32 v11, s98\nv_mov_b32 v12, s94\nv_mov_b32 v13, s96\ns_lshl_b32 s3, s2, 4\nv_mov_b32 v14, s3")
        a("s_cmp_lg_u32 s20, 0\ns_cbranch_scc1 K1_END\nbuffer_store_dwordx4 v[10:13], v14, s[44:47], 0 offen")

    vm, lg = main(False)
    lg.wait(lg.n)
    a(f"s_mov_b32 s41, {fbits(K0C)}\ns_mov_b32 s42, {fbits(K1C)}")
    for rt in range(2):
        r = 162 + rt; b = 32 + rt * 4
        a(f"""v_mul_f32 v{b+3}, v{r}, v{r}
              v_mul_f32 v{b}, s41, v{r}
              v_mul_f32 v{b+1}, s42, v{r}
              v_rcp_f32 v{b+2}, v{b+3}
              v_mul_f32 v{b+1}, v{b+1}, v{b+3}""")
    a("s_lshl_b32 s3, s23, 1\ns_add_u32 s3, s3, s27\ns_mul_i32 s3, s3, 112\ns_lshl_b32 s31, s24, 3\ns_add_u32 s3, s3, s31\ns_lshl_b32 s31, s28, 1\ns_add_u32 s3, s3, s31\ns_lshl_b32 s38, s3, 11")
    for rt in range(2):
        m = 160 + rt; b = 32 + rt * 4
        for j in range(2):
            T = 40 + 0
            ops = [[] for _ in range(9)]
            for e in range(8):
                idx = j * 8 + e
                ag = 64 + (rt * 2) * 16 + idx; au = ag + 16
                cg_ = 128 + idx; cu = 144 + idx
                tg, tu, z = T + e, T + 8 + e, T + 16 + e
                seq = [f"v_fma_f32 v{tg}, -v{m}, v{cg_}, v{ag}",
                       f"v_fma_f32 v{tu}, -v{m}, v{cu}, v{au}",
                       f"v_mul_f32 v{z}, v{tg}, v{tg}",
                       f"v_fma_f32 v{z}, v{z}, v{b+1}, v{b}",
                       f"v_mul_f32 v{z}, v{z}, v{tg}",
                       f"v_exp_f32 v{z}, v{z}",
                       f"v_mul_f32 v{tu}, v{tu}, v{tg}",
                       f"v_fma_f32 v{z}, v{z}, v{b+2}, v{b+2}",
                       f"v_rcp_f32 v{z}, v{z}"]
                for k_, s_ in enumerate(seq): ops[k_].append(s_)
            for k_ in range(9):
                for s_ in ops[k_]: a(s_)
            for e in range(8): a(f"v_mul_f32 v{T+8+e}, v{T+8+e}, v{T+16+e}")
            O = 164 + 4 * ((rt * 2 + j) & 1)
            for q in range(4): a(f"v_cvt_pk_bf16_f32 v{O+q}, v{T+8+2*q}, v{T+9+2*q}")
            a(f"buffer_store_dwordx4 v[{O}:{O+3}], v25, s[52:55], s38 offen offset:{j*2048+rt*1024}")
    a("s_cmp_lg_u32 s2, 0\ns_cbranch_scc1 K1_FFN_DONE")
    srd(a, 44, 18, 19, F_SZ, F_OFF)
    a("v_mov_b32 v8, 0\nv_mov_b32 v9, 0\nv_mov_b32 v10, 0\nv_mov_b32 v11, 0\nv_lshlrev_b32 v12, 4, v0")
    a("buffer_store_dwordx4 v[8:11], v12, s[44:47], 0 offen")
    a.label("K1_FFN_DONE")
    stamps_out()
    a("s_endpgm")
    a.label("K1_DFT")
    a("s_nop 4 ; hz:barrier")
    vm, lg = main(True)
    srd(a, 52, 18, 19, Z_SZ, Z_OFF)
    lg.wait(lg.n)
    a("s_cmp_eq_u32 s24, 14\ns_cselect_b32 s3, 0, 1\ns_add_u32 s3, s3, s28\nv_add_u32 v162, s3, v24\nv_cmp_eq_u32 vcc, 0, v162")
    a("s_mul_i32 s39, s20, 9216\nv_mul_u32_u24 v163, 144, v24\nv_lshl_add_u32 v163, v23, 4, v163\nv_add_u32 v163, s39, v163")
    for rt in range(2):
        for p in range(2):
            for j in range(2):
                T = 32 + 8 * ((p * 2 + j) & 1)
                for e in range(8):
                    idx = j * 8 + e
                    ac = 64 + (rt * 2 + p) * 16 + idx
                    a(f"v_mul_f32 v{T+e}, v{ac}, v{128+rt*16+idx}")
                for e in range(8):
                    idx = j * 8 + e
                    a(f"v_fma_f32 v{T+e}, -v{160+p}, v{176+rt*16+idx}, v{T+e}")
                if p == 1:
                    for e in range(8):
                        idx = j * 8 + e
                        a(f"v_cndmask_b32 v{T+e}, v{T+e}, v{208+rt*16+idx}, vcc")
                O = 48 + 4 * ((p * 2 + j) & 3)
                for q in range(4): a(f"v_cvt_pk_bf16_f32 v{O+q}, v{T+2*q}, v{T+1+2*q}")
                a(f"ds_write_b128 v163, v[{O}:{O+3}] offset:{p*32*144 + (4*rt+2*j)*16}"); lg.issue()
    a("v_lshrrev_b32 v164, 3, v1\nv_and_b32 v165, 7, v1\nv_mul_u32_u24 v166, 144, v164\nv_lshl_add_u32 v166, v165, 4, v166\nv_add_u32 v166, s39, v166")
    a("v_lshlrev_b32 v167, 13, v164\nv_lshl_add_u32 v167, v165, 4, v167")
    a("""s_sub_u32 s3, s24, 14
         s_lshl_b32 s3, s3, 7
         s_lshl_b32 s31, s28, 5
         s_add_u32 s3, s3, s31
         s_lshl_b32 s38, s3, 13
         s_and_b32 s3, s23, 1
         s_lshl_b32 s3, s3, 11
         s_add_u32 s38, s38, s3
         s_lshr_b32 s3, s23, 1
         s_lshl_b32 s3, s3, 8
         s_add_u32 s38, s38, s3
         s_lshl_b32 s3, s27, 7
         s_add_u32 s38, s38, s3""")
    lg.wait(lg.n)
    toks = []
    for i in range(8):
        r = 64 + 4 * i
        a(f"ds_read_b128 v[{r}:{r+3}], v166 offset:{i*1152}"); toks.append(lg.issue())
    for i in range(8):
        r = 64 + 4 * i
        lg.wait(toks[i])
        a(f"s_add_u32 s3, s38, {(i & 3) * 8 * 8192 + (i >> 2) * 4096}")
        a(f"buffer_store_dwordx4 v[{r}:{r+3}], v167, s[52:55], s3 offen")
    stamps_out()
    a.label("K1_END")
    lines, n = hz.fix(a.l)
    return "\n".join(lines), 240

K2_LDS = 4 * 64 * 272
def gen_k2(cfg):
    a = Asm()
    stamp = cfg.get("stamp", False); pre = cfg.get("pre2", 13)
    vm = Cnt(a, "vmcnt", 63); lg = Cnt(a, "lgkmcnt", 15)
    a("s_cmp_ge_u32 s2, 256\ns_cbranch_scc1 K2_END")
    a("s_load_dwordx2 s[4:5], s[0:1], 0\ns_load_dwordx2 s[6:7], s[0:1], 72\ns_load_dwordx2 s[18:19], s[0:1], 88")
    if stamp: a("s_memtime s[90:91]\ns_memrealtime s[92:93]")
    a("v_lshrrev_b32 v2, 6, v0\nv_and_b32 v1, 63, v0\nv_lshlrev_b32 v3, 4, v1\nv_readfirstlane_b32 s20, v2")
    a("s_and_b32 s21, s2, 7\ns_lshr_b32 s22, s2, 3\ns_lshl_b32 s23, s21, 2\ns_lshr_b32 s3, s22, 3\ns_add_u32 s23, s23, s3\ns_and_b32 s24, s22, 7")
    a("s_mul_i32 s3, s20, 28\ns_mul_i32 s25, s23, 112\ns_add_u32 s25, s25, s3\ns_lshl_b32 s25, s25, 11\ns_mul_i32 s26, s24, 112\ns_add_u32 s26, s26, s3\ns_lshl_b32 s26, s26, 11\ns_lshl_b32 s27, s2, 13")
    a("s_waitcnt lgkmcnt(0)")
    srd(a, 44, 18, 19, H_SZ, H_OFF)
    srd(a, 48, 18, 19, WT_SZ, WT_OFF)
    srd(a, 52, 18, 19, Z_SZ, Z_OFF)
    srd(a, 56, 18, 19, Y_SZ, Y_OFF)
    srd(a, 60, 18, 19, F_SZ, F_OFF)
    srd(a, 64, 4, 5, 0x200000)
    srd(a, 68, 6, 7, 0x200000)
    ZR, ZI = 64, 80
    a("s_add_u32 s28, s27, 4096")
    for f in range(4):
        a(f"buffer_load_dwordx4 v[{ZR+4*f}:{ZR+4*f+3}], v3, s[52:55], s27 offen offset:{f*1024}"); vm.issue()
    for f in range(4):
        a(f"buffer_load_dwordx4 v[{ZI+4*f}:{ZI+4*f+3}], v3, s[52:55], s28 offen offset:{f*1024}"); ztok = vm.issue()
    ktok = {}
    def loads(ks):
        r = (ks % 16) * 16
        o = (ks & 1) * 2048
        if ks and not (ks & 1): a("s_add_u32 s25, s25, 4096\ns_add_u32 s26, s26, 4096")
        a(f"buffer_load_dwordx4 a[{r}:{r+3}], v3, s[48:51], s26 offen offset:{o}"); vm.issue()
        a(f"buffer_load_dwordx4 a[{r+8}:{r+11}], v3, s[44:47], s25 offen offset:{o}"); vm.issue()
        a(f"buffer_load_dwordx4 a[{r+4}:{r+7}], v3, s[48:51], s26 offen offset:{o+1024}"); vm.issue()
        a(f"buffer_load_dwordx4 a[{r+12}:{r+15}], v3, s[44:47], s25 offen offset:{o+1024}"); ktok[ks] = vm.issue()
    nxt = 0
    for ks in range(pre): loads(ks); nxt += 1
    a("v_and_b32 v4, 15, v1\nv_lshrrev_b32 v5, 4, v1\ns_lshl_b32 s3, s20, 4\nv_add_u32 v6, s3, v4\ns_mov_b32 s40, 0x80008000")
    FR, FI, FN = 96, 104, 112
    TW = 120
    GC, GS = 136, 144
    tmp = 152
    a("v_lshlrev_b32 v7, 3, v5\nv_mul_u32_u24 v7, v7, v6")
    for ks in range(2):
        for j in range(8):
            t = tmp + j
            a(f"v_mad_u32_u24 v{t}, v6, {32*ks+j}, v7" if 32 * ks + j <= 64 else "ERR")
        for j in range(8): a(f"v_and_b32 v{tmp+j}, 63, v{tmp+j}")
        for j in range(8): a(f"v_cvt_f32_u32 v{tmp+j}, v{tmp+j}")
        for j in range(8): a(f"v_mul_f32 v{tmp+j}, 0x3c800000, v{tmp+j}")
        for j in range(8): a(f"v_sin_f32 v{tmp+8+j}, v{tmp+j}")
        for j in range(8): a(f"v_cos_f32 v{tmp+j}, v{tmp+j}")
        for i in range(4): a(f"v_cvt_pk_bf16_f32 v{FN+4*ks+i}, v{tmp+8+2*i}, v{tmp+9+2*i}")
        for i in range(4): a(f"v_cvt_pk_bf16_f32 v{FR+4*ks+i}, v{tmp+2*i}, v{tmp+1+2*i}")
        for i in range(4): a(f"v_xor_b32 v{FI+4*ks+i}, s40, v{FN+4*ks+i}")
    a("v_lshlrev_b32 v7, 2, v5\nv_mul_u32_u24 v7, v7, v6")
    for i in range(8):
        tile, r = i >> 2, i & 3
        a(f"v_mad_u32_u24 v{tmp+i}, v6, {16*tile+r}, v7")
    for i in range(8): a(f"v_cvt_f32_u32 v{tmp+i}, v{tmp+i}")
    for i in range(8): a(f"v_mul_f32 v{tmp+i}, 0x3a000000, v{tmp+i}")
    for i in range(8): a(f"v_cos_f32 v{TW+i}, v{tmp+i}")
    for i in range(8): a(f"v_sin_f32 v{TW+8+i}, v{tmp+i}")
    for t2 in range(2):
        a(f"v_add_u32 v8, {16*t2}, v4\nv_lshlrev_b32 v7, 2, v5\nv_mul_u32_u24 v7, v7, v8")
        for i in range(8):
            tile, r = i >> 2, i & 3
            a(f"v_mad_u32_u24 v{tmp+i}, v8, {16*tile+r}, v7")
        for i in range(8): a(f"v_and_b32 v{tmp+i}, 31, v{tmp+i}")
        for i in range(8): a(f"v_cvt_f32_u32 v{tmp+i}, v{tmp+i}")
        for i in range(8): a(f"v_mul_f32 v{tmp+i}, 0x3d000000, v{tmp+i}")
        for i in range(8): a(f"v_sin_f32 v{tmp+8+i}, v{tmp+i}")
        for i in range(8): a(f"v_cos_f32 v{tmp+i}, v{tmp+i}")
        for i in range(4): a(f"v_cvt_pk_bf16_f32 v{GS+4*t2+i}, v{tmp+8+2*i}, v{tmp+9+2*i}")
        for i in range(4): a(f"v_cvt_pk_bf16_f32 v{GC+4*t2+i}, v{tmp+2*i}, v{tmp+1+2*i}")
    a("v_lshlrev_b32 v9, 8, v4\nv_lshl_add_u32 v9, v5, 4, v9\ns_lshl_b32 s3, s20, 6\nv_add_u32 v9, s3, v9")
    a("s_mov_b32 s29, s27")
    a("s_mov_b32 s30, 0")
    vm.wait(ztok)
    if stamp: a("s_memtime s[94:95]")
    SV = 168
    a("s_cmp_lg_u32 s2, 0\ns_cbranch_scc1 K2_FFT")
    for i in range(16): a(f"v_mov_b32 v{SV+i}, v{ZI+i}")
    for i in range(16): a(f"v_mov_b32 v{ZI+i}, 0")
    a.label("K2_FFT")
    a("s_nop 1 ; hz:barrier")
    YR, YI = 184, 192
    for tile in range(2):
        for ks in range(2):
            f = tile * 2 + ks
            c = "0" if ks == 0 else f"v[{YR+4*tile}:{YR+4*tile+3}]"
            a(f"v_mfma_f32_16x16x32_bf16 v[{YR+4*tile}:{YR+4*tile+3}], v[{ZR+4*f}:{ZR+4*f+3}], v[{FR+4*ks}:{FR+4*ks+3}], {c}")
            c = "0" if ks == 0 else f"v[{YI+4*tile}:{YI+4*tile+3}]"
            a(f"v_mfma_f32_16x16x32_bf16 v[{YI+4*tile}:{YI+4*tile+3}], v[{ZR+4*f}:{ZR+4*f+3}], v[{FI+4*ks}:{FI+4*ks+3}], {c}")
        for ks in range(2):
            f = tile * 2 + ks
            a(f"v_mfma_f32_16x16x32_bf16 v[{YR+4*tile}:{YR+4*tile+3}], v[{ZI+4*f}:{ZI+4*f+3}], v[{FN+4*ks}:{FN+4*ks+3}], v[{YR+4*tile}:{YR+4*tile+3}]")
            a(f"v_mfma_f32_16x16x32_bf16 v[{YI+4*tile}:{YI+4*tile+3}], v[{ZI+4*f}:{ZI+4*f+3}], v[{FR+4*ks}:{FR+4*ks+3}], v[{YI+4*tile}:{YI+4*tile+3}]")
    for i in range(8): a(f"v_mul_f32 v{tmp+i}, v{YR+i}, v{TW+i}")
    for i in range(8): a(f"v_mul_f32 v{tmp+8+i}, v{YI+i}, v{TW+i}")
    for i in range(8): a(f"v_fmac_f32 v{tmp+i}, v{YI+i}, v{TW+8+i}")
    for i in range(8): a(f"v_fma_f32 v{tmp+8+i}, -v{YR+i}, v{TW+8+i}, v{tmp+8+i}")
    PR, PI = 200, 204
    for i in range(4): a(f"v_cvt_pk_bf16_f32 v{PR+i}, v{tmp+2*i}, v{tmp+1+2*i}")
    for i in range(4): a(f"v_cvt_pk_bf16_f32 v{PI+i}, v{tmp+8+2*i}, v{tmp+9+2*i}")
    OUT = 208
    for t2 in range(2):
        a(f"v_mfma_f32_16x16x32_bf16 v[{OUT+4*t2}:{OUT+4*t2+3}], v[{PR}:{PR+3}], v[{GC+4*t2}:{GC+4*t2+3}], 0")
    for t2 in range(2):
        a(f"v_mfma_f32_16x16x32_bf16 v[{OUT+4*t2}:{OUT+4*t2+3}], v[{PI}:{PI+3}], v[{GS+4*t2}:{GS+4*t2+3}], v[{OUT+4*t2}:{OUT+4*t2+3}]")
    a("s_add_u32 s31, s29, 4096")
    a(f"buffer_store_dwordx4 v[{OUT}:{OUT+3}], v9, s[56:59], s29 offen sc1")
    a(f"buffer_store_dwordx4 v[{OUT+4}:{OUT+7}], v9, s[56:59], s31 offen sc1")
    a("s_cmp_lg_u32 s2, 0\ns_cbranch_scc1 K2_FFT_DONE\ns_cmp_lg_u32 s30, 0\ns_cbranch_scc1 K2_FFT_W0")
    for i in range(16): a(f"v_mov_b32 v{ZR+i}, v{SV+i}")
    a(f"s_mov_b32 s30, 1\ns_mov_b32 s29, {256*8192}\ns_branch K2_FFT")
    a.label("K2_FFT_W0")
    a("s_waitcnt vmcnt(0)\nv_mov_b32 v10, 1\ns_lshl_b32 s3, s20, 2\ns_add_u32 s3, s3, 4096\nv_mov_b32 v11, s3\nbuffer_store_dword v10, v11, s[60:63], 0 offen sc1\ns_waitcnt vmcnt(0)")
    a.label("K2_FFT_DONE")
    a("s_nop 1 ; hz:barrier")
    vm.issue(); ytok = vm.issue()
    ACC = 0 + 0
    AC = [216 - 216 + 64 + 16 * i for i in range(4)]
    flag_done = False
    polled = False
    for ks in range(28):
        vm.wait(ktok[ks])
        if not flag_done and vm.done >= ytok:
            a("v_mov_b32 v10, 1\ns_lshl_b32 s3, s2, 4\ns_lshl_b32 s31, s20, 2\ns_add_u32 s3, s3, s31\nv_mov_b32 v11, s3\nbuffer_store_dword v10, v11, s[60:63], 0 offen sc1"); vm.issue()
            flag_done = True
        r = (ks % 16) * 16
        for et in range(2):
            for tt in range(2):
                ac = AC[et * 2 + tt]
                c = "0" if ks == 0 else f"v[{ac}:{ac+15}]"
                a(f"v_mfma_f32_32x32x16_bf16 v[{ac}:{ac+15}], a[{r+4*et}:{r+4*et+3}], a[{r+8+4*tt}:{r+11+4*tt}], {c}")
        while nxt < 28 and nxt <= ks + 15 and vm.n - vm.done + 4 <= 60:
            loads(nxt); nxt += 1
    assert flag_done
    if stamp: a("s_memtime s[96:97]")
    a("""v_lshrrev_b32 v12, 2, v1
         v_and_b32 v13, 3, v1
         s_lshl_b32 s3, s23, 6
         s_lshl_b32 s31, s20, 4
         s_add_u32 s3, s3, s31
         v_add_u32 v14, s3, v12
         v_lshlrev_b32 v14, 10, v14
         v_lshl_add_u32 v14, v13, 4, v14
         s_lshl_b32 s32, s24, 7""")
    a("buffer_load_dwordx4 v[128:131], v14, s[64:67], s32 offen"); vm.issue()
    a("buffer_load_dwordx4 v[132:135], v14, s[64:67], s32 offen offset:64"); xtok = vm.issue()
    a("""v_and_b32 v15, 31, v1
         v_lshrrev_b32 v16, 5, v1
         s_lshl_b32 s3, s24, 6
         s_lshr_b32 s31, s20, 1
         s_lshl_b32 s31, s31, 5
         s_add_u32 s33, s3, s31
         v_add_u32 v17, s33, v15
         v_sub_u32 v18, 512, v17
         v_min_u32 v17, v17, v18
         v_lshlrev_b32 v17, 4, v17""")
    a("s_mov_b32 s36, 0")
    a.label("K2_POLL")
    if cfg.get("pollmax", 0):
        a(f"s_add_u32 s36, s36, 1\ns_cmp_gt_u32 s36, {cfg['pollmax']}\ns_cbranch_scc1 K2_POLL_OK")
    a("""buffer_load_dwordx4 v[20:23], v17, s[60:63], 0 offen sc1
         s_waitcnt vmcnt(0)
         v_and_b32 v20, v20, v21
         v_and_b32 v22, v22, v23
         v_and_b32 v20, v20, v22
         v_cmp_ne_u32 vcc, 1, v20
         s_cbranch_vccz K2_POLL_OK
         s_sleep 2
         s_branch K2_POLL""")
    a.label("K2_POLL_OK")
    a("s_nop 1 ; hz:barrier")
    vm.done = vm.n
    a("""s_lshl_b32 s3, s23, 6
         s_and_b32 s31, s20, 1
         s_lshl_b32 s31, s31, 5
         s_add_u32 s3, s3, s31
         v_add_u32 v18, s3, v15
         v_sub_u32 v19, 2048, v18
         v_and_b32 v19, 2047, v19
         v_lshlrev_b32 v24, 2, v16
         v_add_u32 v24, s33, v24
         v_sub_u32 v25, 512, v24
         s_movk_i32 s34, 8192
         s_movk_i32 s3, -8192
         s_cmp_ge_u32 s24, 4
         s_cselect_b64 vcc, -1, 0
         s_cselect_b32 s34, s3, s34
         v_cndmask_b32 v18, v18, v19, vcc
         v_cndmask_b32 v24, v24, v25, vcc
         v_lshlrev_b32 v24, 13, v24
         v_lshl_add_u32 v24, v18, 2, v24""")
    YV = 136
    for g in range(4):
        for r in range(4):
            i = g * 4 + r
            if i == 0: a("v_mov_b32 v26, v24")
            else: a(f"s_mul_i32 s3, s34, {8*g+r}\nv_add_u32 v26, s3, v24")
            a(f"buffer_load_dword v{YV+i}, v26, s[56:59], 0 offen sc1"); vm.issue()
    a(f"s_mul_i32 s35, s20, {64*272}\nv_mul_u32_u24 v27, 272, v15\nv_lshl_add_u32 v27, v16, 4, v27\nv_add_u32 v27, s35, v27")
    def wr_tile(ti):
        et, tt = ti >> 1, ti & 1
        for g in range(4):
            ac = AC[ti] + 4 * g
            a(f"ds_write_b128 v27, v[{ac}:{ac+3}] offset:{tt*32*272 + et*128 + g*32}"); lg.issue()
    for w in range(4):
        a(f"s_cmp_lg_u32 s20, {w}\ns_cbranch_scc1 K2_W{w}")
        for ti in range(4):
            if ti != w: wr_tile(ti)
        a("s_waitcnt vmcnt(0)")
        for i in range(16): a(f"v_add_f32 v{AC[w]+i}, v{AC[w]+i}, v{YV+i}")
        wr_tile(w)
        a("s_branch K2_WD")
        a.label(f"K2_W{w}")
        a("s_nop 0 ; hz:barrier")
    a.label("K2_WD")
    a("s_waitcnt lgkmcnt(0) ; hz:barrier\ns_barrier")
    a(f"s_lshl_b32 s3, s20, 4\nv_add_u32 v28, s3, v12\nv_mul_u32_u24 v28, 272, v28\nv_lshl_add_u32 v28, v13, 5, v28")
    R = 64
    for half in range(2):
        for p in range(4):
            for q in range(2):
                r = R + ((half * 4 + p) * 2 + q) * 4
                off = p * 64 * 272 + half * 128 + q * 16
                a(f"ds_read_b128 v[{r}:{r+3}], v28 offset:{off}")
    for half in range(2):
        a(f"s_waitcnt lgkmcnt({8 if half == 0 else 0})")
        b = R + half * 32
        for i in range(8): a(f"v_add_f32 v{b+i}, v{b+i}, v{b+8+i}")
        for i in range(8): a(f"v_add_f32 v{b+16+i}, v{b+16+i}, v{b+24+i}")
        x = 128 + 4 * half
        for i in range(4): a(f"v_lshlrev_b32 v{160+2*i}, 16, v{x+i}\nv_and_b32 v{161+2*i}, 0xffff0000, v{x+i}")
        for i in range(8): a(f"v_add_f32 v{b+i}, v{b+i}, v{b+16+i}")
        for i in range(8): a(f"v_add_f32 v{b+i}, v{b+i}, v{160+i}")
        O = 168 + 4 * half
        for i in range(4): a(f"v_cvt_pk_bf16_f32 v{O+i}, v{b+2*i}, v{b+1+2*i}")
        a(f"buffer_store_dwordx4 v[{O}:{O+3}], v14, s[68:71], s32 offen offset:{64*half}")
    if stamp:
        a("s_memtime s[98:99]\ns_waitcnt lgkmcnt(0)")
        a("s_sub_u32 s94, s94, s90\ns_sub_u32 s96, s96, s90\ns_sub_u32 s98, s98, s90")
        srd(a, 44, 18, 19, 65536, DBG_OFF)
        a("v_mov_b32 v10, s92\nv_mov_b32 v11, s98\nv_mov_b32 v12, s94\nv_mov_b32 v13, s96\ns_lshl_b32 s3, s2, 4\ns_add_u32 s3, s3, 4096\nv_mov_b32 v14, s3")
        a("s_cmp_lg_u32 s20, 0\ns_cbranch_scc1 K2_END\nbuffer_store_dwordx4 v[10:13], v14, s[44:47], 0 offen")
    a.label("K2_END")
    lines, n = hz.fix(a.l)
    return "\n".join(lines), 512

HEADER = open("parallel_sum__spectral_fnet__geglu_ffn__prompt.s.ref").read().split("; Override launch")[0]

def build(cfg):
    k1, v1 = gen_k1(cfg)
    k2, v2 = gen_k2(cfg)
    out = HEADER
    out += f"; @launch kernel=fnet_g1_kernel grid=(256,1,1) block=(512,1,1) lds={K1_LDS}\n"
    out += f"; @launch kernel=fnet_g2_kernel grid=(256,1,1) block=(256,1,1) lds={K2_LDS}\n"
    out += HDR + kern("fnet_g1_kernel", k1) + kern("fnet_g2_kernel", k2)
    out += '.section .rodata,"a"\n' + kd("fnet_g1_kernel", v1, 102, 240) + kd("fnet_g2_kernel", 512, 102, 256)
    return out

if __name__ == "__main__":
    cfg = {}
    for kv in sys.argv[2:]:
        k, v = kv.split("=")
        cfg[k] = int(v) if v.lstrip("-").isdigit() else v
    open(sys.argv[1], "w").write(build(cfg))
```

```python
import sys, math
from asmlib import Asm, kd, kern, HDR
import hz

H_OFF, H_SZ = 0x0, 32 * 112 * 2 * 1024
WT_OFF, WT_SZ = 0x800000, 8 * 112 * 2 * 1024
Z_OFF, Z_SZ = 0xA00000, 256 * 2 * 4096
Y_OFF, Y_SZ = 0xC00000, 257 * 8192
F_OFF, F_SZ = 0xF00000, 257 * 16
RT_REL, CT_REL, FT_SZ = 0x10000, 0x20000, 0x30000
DBG_OFF = 0x1000000

class Cnt:
    def __init__(self, a, name, cap):
        self.a, self.name, self.cap = a, name, cap
        self.n = 0
        self.done = 0
    def issue(self):
        self.n += 1
        return self.n
    def need(self, tok):
        if tok is None or tok <= self.done: return None
        return self.n - tok
    def wait(self, tok):
        k = self.need(tok)
        if k is None: return
        k = min(k, self.cap)
        self.a(f"s_waitcnt {self.name}({k})")
        self.done = max(self.done, self.n - k)
    def mark(self, tok):
        if tok is not None: self.done = max(self.done, tok)

def wait2(a, vm, vt, lg, lt):
    parts = []
    k = vm.need(vt)
    if k is not None:
        k = min(k, vm.cap); parts.append(f"vmcnt({k})"); vm.done = max(vm.done, vm.n - k)
    k = lg.need(lt)
    if k is not None:
        k = min(k, lg.cap); parts.append(f"lgkmcnt({k})"); lg.done = max(lg.done, lg.n - k)
    if parts: a("s_waitcnt " + " ".join(parts))

def interleave(a, main, fill):
    n = len(main); f = len(fill); p = 0
    for i, m in enumerate(main):
        a(m)
        q = (f * (i + 1)) // n
        while p < q:
            a(fill[p]); p += 1

def srd(a, d, lo, hi, size, off=0):
    if off:
        a(f"s_add_u32 s{d}, s{lo}, {off}\ns_addc_u32 s{d+1}, s{hi}, 0")
    else:
        a(f"s_mov_b32 s{d}, s{lo}\ns_mov_b32 s{d+1}, s{hi}")
    a(f"s_mov_b32 s{d+2}, {size}\ns_mov_b32 s{d+3}, 0x20000")

def stamp_store(a, kidx, endlabel):
    a("s_memtime s[98:99]\ns_memrealtime s[100:101]\ns_waitcnt lgkmcnt(0)")
    a("s_sub_u32 s94, s94, s90\ns_sub_u32 s96, s96, s90\ns_sub_u32 s98, s98, s90\ns_sub_u32 s86, s86, s90\ns_sub_u32 s88, s88, s90")
    srd(a, 44, 18, 19, 65536, DBG_OFF)
    a("v_mov_b32 v8, s92\nv_mov_b32 v9, s100\nv_mov_b32 v10, s98\nv_mov_b32 v11, s94\nv_mov_b32 v12, s96\nv_mov_b32 v13, s86\nv_mov_b32 v14, s88\nv_mov_b32 v15, 0")
    a(f"s_lshl_b32 s3, s2, 5\ns_add_u32 s3, s3, {kidx*8192}\nv_mov_b32 v16, s3")
    a(f"s_cmp_lg_u32 s20, 0\ns_cbranch_scc1 {endlabel}\nbuffer_store_dwordx4 v[8:11], v16, s[44:47], 0 offen\nbuffer_store_dwordx4 v[12:15], v16, s[44:47], 0 offen offset:16")

WB, WSL = 49152, 16384
SCR = WB + 6 * WSL
FIN = SCR + 8192
CS = FIN + 2048
JS = CS + 1024
STW = JS + 2048
K1_LDS = STW + 64
K0C = -2.0 * math.sqrt(2.0 / math.pi) * math.log2(math.e)
K1C = K0C * 0.044715
def fbits(x):
    import struct
    return "0x%08x" % struct.unpack("<I", struct.pack("<f", x))[0]

def gen_k1(cfg):
    a = Asm()
    ST1 = {0: "", 1: " sc1", 2: " nt", 3: " sc0 sc1"}[cfg.get("st1", 1)]
    mapping = cfg.get("map1", "A"); init = cfg.get("init", 3); stamp = cfg.get("stamp", False)
    jobpos = cfg.get("jobpos", 3); bgk = cfg.get("bgk", 12)
    POLL_S = cfg.get("poll_s", 10)
    a("s_cmp_ge_u32 s2, 256\ns_cbranch_scc1 K1_END")
    a("""s_load_dwordx2 s[4:5], s[0:1], 0
         s_load_dwordx4 s[8:11], s[0:1], 24
         s_load_dwordx4 s[12:15], s[0:1], 48
         s_load_dwordx2 s[16:17], s[0:1], 64
         s_load_dwordx2 s[72:73], s[0:1], 80
         s_load_dwordx2 s[18:19], s[0:1], 88""")
    if stamp: a("s_memtime s[90:91]\ns_memrealtime s[92:93]\ns_mov_b64 s[86:87], 0\ns_mov_b64 s[88:89], 0")
    a("v_lshrrev_b32 v2, 6, v0\nv_and_b32 v1, 63, v0\ns_mov_b32 s40, 0xffff0000\nv_readfirstlane_b32 s20, v2")
    a("s_and_b32 s21, s2, 7\ns_lshr_b32 s22, s2, 3")
    if mapping == "A":
        a("s_and_b32 s23, s21, 1\ns_lshl_b32 s23, s23, 3\ns_and_b32 s3, s22, 7\ns_add_u32 s23, s23, s3")
        a("s_lshr_b32 s24, s21, 1\ns_lshl_b32 s24, s24, 2\ns_lshr_b32 s3, s22, 3\ns_add_u32 s24, s24, s3")
    else:
        a("s_lshl_b32 s23, s21, 1\ns_and_b32 s3, s22, 1\ns_add_u32 s23, s23, s3\ns_lshr_b32 s24, s22, 1")
    a("s_lshr_b32 s27, s20, 2\ns_and_b32 s28, s20, 3")
    a("""v_and_b32 v20, 3, v1
         v_lshrrev_b32 v21, 2, v1
         v_lshrrev_b32 v22, 4, v1
         v_lshrrev_b32 v26, 3, v1
         v_and_b32 v27, 7, v1
         v_lshlrev_b32 v25, 4, v1""")
    a("s_mov_b32 s46, 0x200000\ns_mov_b32 s47, 0x20000")
    a("s_cmp_ge_u32 s24, 14\ns_cbranch_scc1 K1_DFT")

    def L(txt): return [x.strip() for x in txt.split("\n") if x.strip()]

    def setup_frag():
        a("v_lshrrev_b32 v23, 5, v1\nv_and_b32 v24, 31, v1")
        a("""v_lshrrev_b32 v14, 1, v24
             v_and_b32 v14, 7, v14
             v_xor_b32 v14, v14, v23
             v_lshlrev_b32 v14, 4, v14
             v_lshlrev_b32 v15, 7, v24
             s_lshl_b32 s3, s27, 13
             v_add3_u32 v14, v14, v15, s3
             v_xor_b32 v15, 32, v14
             v_xor_b32 v16, 64, v14
             v_xor_b32 v17, 0x60, v14""")
        a(f"""v_and_b32 v29, 3, v21
              v_lshlrev_b32 v29, 6, v29
              v_and_b32 v5, 1, v22
              v_lshlrev_b32 v5, 5, v5
              v_lshlrev_b32 v6, 3, v20
              v_add3_u32 v29, v29, v5, v6
              v_lshlrev_b32 v5, 9, v23
              s_lshl_b32 s3, s28, 11
              s_add_u32 s3, s3, {WB}
              v_add3_u32 v5, v29, v5, s3
              v_add_u32 v6, {3*WSL}, v5""")

    def ln_finish(su, sq, al, sel):
        return L(f"""v_mul_f32 v164, 0x3b000000, {su}
                 v_mul_f32 v166, 0x3b000000, {sq}
                 v_fma_f32 v166, -v164, v164, v166
                 v_max_f32 v166, 0, v166
                 v_cvt_pk_bf16_f32 v167, v164, v166
                 v_lshlrev_b32 v164, 16, v167
                 v_and_b32 v166, s40, v167
                 v_add_f32 v166, 0x3727c5ac, v166
                 v_cvt_pk_bf16_f32 v166, v166, v166
                 v_and_b32 v166, s40, v166
                 v_sqrt_f32 v166, v166
                 v_cmp_eq_u32 vcc, 1, {sel}
                 v_cvt_pk_bf16_f32 v166, v166, v166
                 v_and_b32 v166, s40, v166
                 v_rcp_f32 v166, v166
                 v_cmp_eq_u32 s[80:81], 2, {sel}
                 v_mul_f32 v167, v164, v166
                 v_mul_f32 v165, {al}, v166
                 v_cndmask_b32 v164, v164, v166, vcc
                 v_cmp_eq_u32 vcc, 3, {sel}
                 v_cndmask_b32 v164, v164, v167, s[80:81]
                 v_cndmask_b32 v164, v164, v165, vcc""")
    def row_part(S, T, O):
        ops = []
        for i in range(4):
            ops += [f"v_lshlrev_b32 v{T+2*i}, 16, v{S+i}", f"v_and_b32 v{T+1+2*i}, s40, v{S+i}"]
        ops += L(f"""v_add_f32 v{O}, v{T}, v{T+2}
                    v_add_f32 v{O+1}, v{T+1}, v{T+3}
                    v_mul_f32 v{O+2}, v{T}, v{T}
                    v_mul_f32 v{T+8}, v{T+1}, v{T+1}
                    v_add_f32 v{O}, v{O}, v{T+4}
                    v_add_f32 v{O+1}, v{O+1}, v{T+5}
                    v_fmac_f32 v{O+2}, v{T+2}, v{T+2}
                    v_fmac_f32 v{T+8}, v{T+3}, v{T+3}
                    v_add_f32 v{O}, v{O}, v{T+6}
                    v_add_f32 v{O+1}, v{O+1}, v{T+7}
                    v_fmac_f32 v{O+2}, v{T+4}, v{T+4}
                    v_fmac_f32 v{T+8}, v{T+5}, v{T+5}
                    v_add_f32 v{T+9}, v{O}, v{O+1}
                    v_fmac_f32 v{O+2}, v{T+6}, v{T+6}
                    v_fmac_f32 v{T+8}, v{T+7}, v{T+7}
                    v_sub_f32 v{O+1}, v{O}, v{O+1}
                    v_mov_b32 v{O}, v{T+9}
                    v_add_f32 v{O+2}, v{O+2}, v{T+8}""")
        return ops
    def row_job2():
        ops = row_part(128, 136, 146) + row_part(132, 136, 149)
        ops += L("""v_permlane32_swap_b32 v146, v149
                    v_permlane32_swap_b32 v147, v150
                    v_permlane32_swap_b32 v148, v151
                    v_add_f32 v146, v146, v149
                    v_add_f32 v147, v147, v150
                    v_add_f32 v148, v148, v151
                    v_permlane16_swap_b32 v146, v147
                    v_mov_b32 v149, v148
                    v_add_f32 v146, v146, v147
                    v_permlane16_swap_b32 v148, v149
                    v_add_f32 v148, v148, v149""")
        for r in (8, 4, 2, 1):
            ops += [f"v_add_f32_dpp v146, v146, v146 row_ror:{r} row_mask:0xf bank_mask:0xf",
                    f"v_add_f32_dpp v148, v148, v148 row_ror:{r} row_mask:0xf bank_mask:0xf"]
        ops += L("v_mov_b32 v147, v146\nv_permlane16_swap_b32 v146, v147")
        ops += ln_finish("v146", "v148", "v147", "v20")
        return ops
    def col_sum4():
        ops = []
        for i in range(4):
            for hi in range(2):
                f = (lambda t, r: f"v_and_b32 v{t}, s40, v{r}") if hi else (lambda t, r: f"v_lshlrev_b32 v{t}, 16, v{r}")
                c = 156 + 2 * i + hi
                ops += [f(152, 136 + i), f(153, 140 + i), f(154, 144 + i), f(155, 148 + i),
                        f"v_add_f32 v{c}, v152, v153", "v_add_f32 v154, v154, v155", f"v_add_f32 v{c}, v{c}, v154"]
        return ops
    def col_red():
        return L("""v_permlane32_swap_b32 v156, v160
                    v_permlane32_swap_b32 v157, v161
                    v_permlane32_swap_b32 v158, v162
                    v_permlane32_swap_b32 v159, v163
                    v_add_f32 v156, v156, v160
                    v_add_f32 v157, v157, v161
                    v_add_f32 v158, v158, v162
                    v_add_f32 v159, v159, v163
                    v_permlane16_swap_b32 v156, v158
                    v_permlane16_swap_b32 v157, v159
                    v_add_f32 v156, v156, v158
                    v_add_f32 v157, v157, v159
                    v_add_f32_dpp v156, v156, v156 row_ror:8 row_mask:0xf bank_mask:0xf
                    v_add_f32_dpp v157, v157, v157 row_ror:8 row_mask:0xf bank_mask:0xf""")

    def main(dft, role):
        U = ("D" if dft else "F") + role
        vm = Cnt(a, "vmcnt", 63); lg = Cnt(a, "lgkmcnt", 15)
        stride = 1024 if dft else 3584
        wsz = 524288 if dft else 1835008
        lo0, lo1 = (8, 10) if dft else (12, 14)
        T = {}
        tl = cfg.get("tl")
        if dft: a("s_sub_u32 s83, s24, 14\ns_lshl_b32 s83, s83, 8")
        else: a("s_lshl_b32 s83, s24, 8")
        Q = []
        stage_tok = {}
        S0 = cfg.get("s0", 6)
        def dma_setup():
            if not dft:
                a("s_lshl_b32 s3, s23, 7\ns_lshl_b32 s31, s28, 4\ns_add_u32 s3, s3, s31\nv_add_u32 v2, s3, v26")
            else:
                a("""v_and_b32 v2, 3, v26
                     v_lshlrev_b32 v2, 5, v2
                     v_lshrrev_b32 v3, 2, v26
                     s_lshr_b32 s3, s23, 1
                     s_lshl_b32 s3, s3, 8
                     s_and_b32 s31, s23, 1
                     s_lshl_b32 s31, s31, 4
                     s_add_u32 s3, s3, s31
                     s_lshl_b32 s31, s28, 1
                     s_add_u32 s3, s3, s31
                     v_add3_u32 v2, v2, v3, s3""")
            a("v_xor_b32 v3, v27, v22\nv_lshlrev_b32 v3, 4, v3\nv_lshl_add_u32 v2, v2, 10, v3\nv_xor_b32 v3, 64, v2")
            a(f"s_lshl_b32 s31, s28, 6\ns_add_u32 s3, s83, s31\nv_mul_u32_u24 v4, {stride}, v21\nv_lshlrev_b32 v8, 4, v20\nv_add3_u32 v4, v4, v8, s3\nv_add_u32 v8, {16*stride}, v4")
            a(f"s_lshl_b32 s25, s28, 11\ns_add_u32 s30, s25, {WB}")
            a(f"s_mov_b32 s50, {wsz}\ns_mov_b32 s51, 0x20000\ns_mov_b32 s6, {wsz}\ns_mov_b32 s7, 0x20000")
        cur = {"s37": None}
        def xpart(J, hf, j):
            def f():
                ro = (128 * j + 8 * hf) * 1024 if dft else (64 * hf + 8 * j) * 1024
                a(f"s_add_u32 m0, s25, {(J % 3) * 16384 + hf * 8192 + j * 1024}\ns_mov_b32 s26, {J*128 + ro}\nbuffer_load_dwordx4 v{2 + j}, s[44:47], s26 offen lds")
                for n in (2 * J, 2 * J + 1): stage_tok[n] = vm.n + 1
                vm.issue()
            return f
        def wpart(n, p, hh):
            def f():
                a(f"s_add_u32 m0, s30, {(n % 6) * WSL + p * 8192 + hh * 1024}")
                a(f"s_mov_b32 s37, {n*32*stride}" if cur["s37"] != n else "s_nop 0"); cur["s37"] = n
                a(f"buffer_load_dwordx4 v{(4, 8)[hh]}, s[{(48, 4)[p]}:{(51, 7)[p]}], s37 offen lds")
                stage_tok[n] = vm.issue()
            return f
        for n in range(16):
            hfs = ([0, 1] if n < S0 else [0]) if role == "A" else ([] if n < S0 else [1])
            if n % 2 == 0: Q += [("X", n // 2, xpart(n // 2, hf, j)) for hf in hfs for j in range(2)]
            Q += [("W", n, wpart(n, hf, hh)) for hf in hfs for hh in range(2)]
        def pump(k, passed):
            n = 0
            while n < k and Q:
                kind, i, f = Q[0]
                if kind == "W" and i > passed + 6: break
                if kind == "X" and 2 * i - 5 > passed: break
                Q.pop(0); f(); n += 1
            return n
        if role == "A":
            dma_setup()
            a("s_waitcnt lgkmcnt(0)")
            if stamp: a("s_memtime s[86:87]")
            a(f"s_mov_b32 s44, s4\ns_mov_b32 s45, s5\ns_mov_b32 s48, s{lo0}\ns_mov_b32 s49, s{lo0+1}\ns_mov_b32 s4, s{lo1}\ns_mov_b32 s5, s{lo1+1}")
            pump(8, -1)
            setup_frag()
            pump(cfg.get("init", 12) - 8, -1)
            srd(a, 52, 18, 19, Z_SZ if dft else H_SZ, Z_OFF if dft else H_OFF)
        else:
            a("s_lshl_b32 s76, s23, 7\ns_lshl_b32 s3, s24, 3\ns_add_u32 s76, s76, s3\ns_lshl_b32 s3, s28, 1\ns_add_u32 s76, s76, s3")
            a(f"s_lshl_b32 s77, s76, 4\ns_add_u32 s77, s77, {RT_REL}\ns_lshl_b32 s76, s76, 10")
            a(f"""s_lshr_b32 s3, s23, 2
                  s_lshl_b32 s3, s3, 7
                  s_lshl_b32 s31, s28, 5
                  s_add_u32 s3, s3, s31
                  v_add_u32 v30, s3, v26
                  v_mul_u32_u24 v30, {stride}, v30
                  s_and_b32 s3, s23, 1
                  s_lshl_b32 s3, s3, 7
                  s_add_u32 s3, s3, s83
                  v_lshlrev_b32 v31, 4, v27
                  v_add3_u32 v30, v30, v31, s3
                  s_mov_b32 s84, {8*stride}
                  s_mov_b32 s85, {16*stride}
                  s_mov_b32 s82, {24*stride}
                  s_mov_b32 s66, {wsz}
                  s_mov_b32 s67, 0x20000""")
            a("s_waitcnt lgkmcnt(0)")
            a(f"s_mov_b32 s44, s4\ns_mov_b32 s45, s5\ns_bitcmp1_b32 s23, 1\ns_cselect_b32 s64, s{lo1}, s{lo0}\ns_cselect_b32 s65, s{lo1+1}, s{lo0+1}")
            def job_loads():
                for t, so in enumerate(("0", "s84", "s85", "s82")):
                    a(f"buffer_load_dwordx4 v[{136+4*t}:{139+4*t}], v30, s[64:67], {so} offen"); T["jc"] = vm.issue()
                a("buffer_load_dwordx4 v[128:131], v25, s[44:47], s76 offen"); vm.issue()
                a("buffer_load_dwordx4 v[132:135], v25, s[44:47], s76 offen offset:1024"); T["jr"] = vm.issue()
            if cfg.get("jobearly", 0): job_loads()
            setup_frag()
            if not cfg.get("jobearly", 0): job_loads()
            srd(a, 52, 18, 19, Z_SZ if dft else H_SZ, Z_OFF if dft else H_OFF)
            srd(a, 68, 18, 19, FT_SZ, F_OFF)
            a("s_mov_b32 s74, 256\ns_mov_b32 s75, 0x20000")
            a(f"""v_mov_b32 v31, 0x1000000
                  v_lshlrev_b32 v10, 2, v1
                  v_cmp_gt_u32 vcc, 16, v1
                  v_cndmask_b32 v9, v31, v25, vcc
                  v_lshlrev_b32 v12, 2, v20
                  v_lshl_add_u32 v12, v23, 4, v12
                  v_cmp_gt_u32 vcc, 4, v24
                  v_cndmask_b32 v12, v31, v12, vcc
                  v_cmp_eq_u32 vcc, 0x100, v0
                  s_and_b32 s3, s2, 63
                  s_lshl_b32 s3, s3, 2
                  v_mov_b32 v11, s3
                  v_cndmask_b32 v11, v31, v11, vcc
                  s_lshl_b32 s78, s24, 12
                  s_add_u32 s78, s78, {CT_REL}
                  s_and_b32 s3, s23, 3
                  s_lshl_b32 s3, s3, 2
                  s_add_u32 s3, s3, s28
                  s_lshl_b32 s3, s3, 8
                  s_lshr_b32 s79, s23, 2
                  s_lshl_b32 s79, s79, 2
                  s_add_u32 s79, s79, s3
                  s_add_u32 s79, s79, s78
                  v_lshlrev_b32 v18, 5, v27
                  v_lshl_add_u32 v18, v22, 3, v18
                  s_lshl_b32 s3, s28, 8
                  v_add_u32 v170, s3, v18
                  s_add_u32 s3, s3, {JS}
                  v_add_u32 v18, s3, v18
                  v_add_u32 v170, {CS}, v170
                  v_and_b32 v19, 15, v1
                  v_lshlrev_b32 v19, 2, v19
                  v_lshl_add_u32 v19, v22, 8, v19
                  s_lshl_b32 s3, s28, 6
                  s_add_u32 s3, s3, {JS}
                  v_add_u32 v19, s3, v19
                  s_lshl_b32 s3, s28, 10
                  v_add_u32 v13, s3, v25
                  s_lshl_b32 s3, s28, 8
                  s_add_u32 s3, s3, {CS}
                  v_add_u32 v169, s3, v10
                  v_lshrrev_b32 v7, 1, v1
                  s_lshl_b32 s3, s28, 5
                  v_add_u32 v7, s3, v7
                  v_and_b32 v31, 1, v1
                  v_lshlrev_b32 v168, 10, v31
                  v_lshl_add_u32 v168, v7, 2, v168
                  v_add_u32 v168, {FIN}, v168
                  v_mov_b32 v179, {STW}
                  v_mov_b32 v176, 1""")
            if not dft:
                a("s_lshl_b32 s3, s23, 7\nv_add_u32 v7, s3, v7")
            else:
                a("""v_lshrrev_b32 v2, 3, v7
                     v_and_b32 v2, 1, v2
                     v_lshlrev_b32 v2, 2, v2
                     v_and_b32 v3, 3, v7
                     v_add_u32 v2, v2, v3
                     v_lshrrev_b32 v3, 4, v7
                     v_lshlrev_b32 v3, 1, v3
                     v_lshrrev_b32 v4, 2, v7
                     v_and_b32 v4, 1, v4
                     v_lshlrev_b32 v2, 5, v2
                     v_add3_u32 v2, v2, v3, v4
                     s_lshr_b32 s3, s23, 1
                     s_lshl_b32 s3, s3, 8
                     s_and_b32 s31, s23, 1
                     s_lshl_b32 s31, s31, 4
                     s_add_u32 s3, s3, s31
                     v_add_u32 v7, s3, v2""")
            a("v_lshlrev_b32 v7, 4, v7\nv_lshl_add_u32 v7, v31, 3, v7")
            if not dft:
                a("s_mul_i32 s32, s23, 14\ns_add_u32 s32, s32, s24\ns_lshr_b32 s33, s32, 1\ns_and_b32 s32, s32, 1\ns_lshl_b32 s32, s32, 2\ns_add_u32 s32, s32, s28")
                a("s_lshl_b32 s34, s33, 14\ns_lshl_b32 s3, s32, 7\ns_add_u32 s34, s34, s3\ns_add_u32 s36, s34, 64")
                a("v_lshlrev_b32 v28, 10, v21\nv_lshl_add_u32 v28, v20, 4, v28")
                a("s_mul_i32 s3, s32, 112\ns_add_u32 s3, s3, s33\ns_lshl_b32 s35, s3, 11")
                a(f"s_lshl_b32 s29, s28, 11\ns_add_u32 s29, s29, {SCR}\nv_lshlrev_b32 v31, 8, v23\nv_add3_u32 v29, v29, v31, s29")
                srd(a, 56, 16, 17, 1835008)
                srd(a, 60, 18, 19, WT_SZ, WT_OFF)
        bg = []
        if role == "B":
            dma_setup()
            a(f"s_mov_b32 s4, s{lo1}\ns_mov_b32 s5, s{lo1+1}")
            def col_write():
                a("ds_write_b64 v18, v[156:157]"); T["cw"] = lg.issue()
            def row_store():
                a("buffer_store_dword v164, v12, s[68:71], s77 offen sc1"); T["rs"] = vm.issue()
            bg = [lambda: vm.wait(T["jc"])] + col_sum4() + col_red() + [col_write, lambda: vm.wait(T["jr"])] + row_job2() + [row_store]
        def run_bg(k):
            for _ in range(k):
                if not bg: return
                x = bg.pop(0)
                if callable(x): x()
                else: a(x)
        def frag_reads(st, ksl, R):
            xo = ((st // 2) % 3) * 16384; xa = 14 + 2 * (st & 1) + ksl
            sl = st % 6; wa = 5 + sl // 3; o = (sl % 3) * WSL + ksl * 1024
            t = {}
            a(f"ds_read_b128 v[{R}:{R+3}], v{xa} offset:{xo}"); lg.issue()
            a(f"ds_read_b64_tr_b16 v[{R+8}:{R+9}], v{wa} offset:{o}"); lg.issue()
            a(f"ds_read_b64_tr_b16 v[{R+10}:{R+11}], v{wa} offset:{o + 256}"); t[0] = lg.issue()
            a(f"ds_read_b64_tr_b16 v[{R+12}:{R+13}], v{wa} offset:{o + 8192}"); lg.issue()
            a(f"ds_read_b64_tr_b16 v[{R+14}:{R+15}], v{wa} offset:{o + 8192 + 256}"); t[1] = lg.issue()
            a(f"ds_read_b128 v[{R+4}:{R+7}], v{xa} offset:{xo + 4096}")
            t[2] = t[3] = lg.issue()
            return t
        def mfma(R, i, first):
            rt, p = i >> 1, i & 1
            ac = 64 + (rt * 2 + p) * 16
            x = f"v[{R+4*rt}:{R+4*rt+3}]"; w = f"v[{R+8+4*p}:{R+11+4*p}]"
            A, B = (x, w) if dft else (w, x)
            c = "0" if first else f"v[{ac}:{ac+15}]"
            a(f"v_mfma_f32_32x32x16_bf16 v[{ac}:{ac+15}], {A}, {B}, {c}")
        X, Y = 32, 48
        WT_S = cfg.get("wts", 4); WT_R = cfg.get("wtr", 8); PCHK = POLL_S + cfg.get("pchk", 2)
        if role == "A": vm.wait(stage_tok[0])
        else: run_bg(cfg.get("bgpre", 0))
        a("s_barrier")
        if stamp: a("s_memtime s[94:95]")
        if tl: a("s_memtime s[88:89]")
        xt = frag_reads(0, 0, X)
        rate = [int(c) for c in str(cfg.get("rate" + role, {"A": "r3333333333", "B": "r0000"}[role]))[1:]]
        dflt = {"A": (1, 2), "B": (2, 1)}[role]
        R_ = lambda hs: rate[hs] if hs < len(rate) else dflt[hs & 1] + cfg.get("rplus", 0)
        flag_sent = False
        exp = 5 if cfg.get("force_fb") else 4
        bg0, bgk = cfg.get("bg0", 12), cfg.get("bgk", 3)
        for s in range(16):
            if role == "B":
                yt = frag_reads(s, 1, Y)
                run_bg(bg0)
                if s == WT_R and not dft:
                    vm.wait(T["wt"])
                    for u in range(2):
                        a(f"ds_read_b64_tr_b16 v[{128+4*u}:{129+4*u}], v29 offset:{u*1024}"); lg.issue()
                        a(f"ds_read_b64_tr_b16 v[{130+4*u}:{131+4*u}], v29 offset:{u*1024+512}"); lg.issue()
            for i in range(4):
                lg.wait(xt[i])
                mfma(X, i, s == 0)
                if i == 0: left = R_(2 * s)
                if role == "A" and i == 0: yt = frag_reads(s, 1, Y)
                else:
                    k = (left + (3 - i)) // (4 - i) if role == "A" else (left + (3 - i)) // (4 - i)
                    left -= pump(k, s - 1) if k else 0
                    run_bg(bgk)
            if role == "B":
                if s == 15:
                    a(f"v_cmp_ne_u32 vcc, 0, v177\ns_cbranch_vccnz K1_SLOW{U}")
                    vm.wait(T["tab"])
                    a("v_add_f32 v128, v128, v129\nv_add_f32 v130, v130, v131")
                    a("ds_write2_b32 v168, v164, v165 offset1:128"); lg.issue()
                    a("v_add_f32 v128, v128, v130")
                    a("ds_write_b32 v169, v128"); lg.issue()
                    a.label(f"K1_BACK{U}")
                if "cw" in T and "crs" not in T: T["crs"] = s
                if s == PCHK:
                    a(f"s_cmp_lg_u32 s20, 4\ns_cbranch_scc1 K1_NP{U}\ns_mov_b32 s85, 0")
                    a.label(f"K1_PL{U}")
                    a(f"""s_waitcnt vmcnt(0)
                          v_cmp_ne_u32 vcc, {exp}, v177
                          v_mov_b32 v180, 0
                          s_cbranch_vccz K1_PW{U}
                          v_mov_b32 v180, 1
                          s_add_u32 s85, s85, 1
                          s_cmp_ge_u32 s85, {cfg.get("fbmax", 200)}
                          s_cbranch_scc1 K1_PW{U}
                          s_sleep 8
                          buffer_load_dword v177, v10, s[72:75], 0 offen sc1
                          s_branch K1_PL{U}""")
                    a.label(f"K1_PW{U}")
                    a("ds_write_b32 v179, v180\ns_waitcnt lgkmcnt(0)")
                    a.label(f"K1_NP{U}")
            vt = stage_tok.get(s + 1); ft = None
            if role == "B" and not flag_sent and "cs" in T and "rs" in T and s >= T["cs_s"] + cfg.get("fdelay", 2):
                ft = max(T["cs"], T["rs"]); vt = max(vt or 0, ft)
            if tl: a("s_memtime s[98:99]"); lg.issue()
            wait2(a, vm, vt, lg, lg.n)
            if tl: a(f"s_sub_u32 s98, s98, s90\nv_writelane_b32 v240, s98, {32+s}\ns_memtime s[98:99]\ns_waitcnt lgkmcnt(0)\ns_sub_u32 s98, s98, s90\nv_writelane_b32 v242, s98, {s}")
            if tl: a(f"s_sub_u32 s88, s88, s90\nv_writelane_b32 v240, s88, {s}")
            a("s_barrier")
            if tl: a("s_memtime s[88:89]")
            def nxt_reads():
                if s < 15: return frag_reads(s + 1, 0, X)
                epi_reads(dft, lg)
            if role == "B":
                if s == T.get("crs"):
                    a("ds_read_b32 v152, v19"); T["cr"] = lg.issue()
                if s == PCHK:
                    a("ds_read_b32 v177, v179"); lg.issue()
                    a(f"s_mov_b32 s3, {RT_REL}\nbuffer_load_dwordx2 v[164:165], v7, s[68:71], s3 offen sc1"); vm.issue()
                    a("buffer_load_dwordx4 v[128:131], v13, s[68:71], s78 offen sc1"); T["tab"] = vm.issue()
                xt = nxt_reads()
                if ft is not None:
                    a("buffer_atomic_add v176, v11, s[72:75], 0 offen sc1"); vm.issue(); flag_sent = True
                    if not dft: print("flag after barrier", s)
                if s == POLL_S:
                    a(f"s_cmp_lg_u32 s20, 4\ns_cbranch_scc1 K1_NL{U}\nbuffer_load_dword v177, v10, s[72:75], 0 offen sc1")
                    a.label(f"K1_NL{U}")
                if s == WT_S and not dft:
                    a("s_mov_b32 m0, s29\ns_nop 0\nbuffer_load_dwordx4 v28, s[56:59], s34 offen lds"); vm.issue()
                    a("s_add_u32 m0, s29, 1024\ns_nop 0\nbuffer_load_dwordx4 v28, s[56:59], s36 offen lds"); T["wt"] = vm.issue()
                if s == WT_R and not dft:
                    a("buffer_store_dwordx4 v[128:131], v25, s[60:63], s35 offen" + ST1); vm.issue()
                    a("buffer_store_dwordx4 v[132:135], v25, s[60:63], s35 offen offset:1024" + ST1); vm.issue()
                run_bg(bg0)
            for i in range(4):
                mfma(Y, i, False)
                if i == 0: left = R_(2 * s + 1)
                if not (role == "A" and i == 0):
                    k = (left + (3 - i)) // (4 - i)
                    left -= pump(k, s) if k else 0
                if role == "A":
                    if i == 0: xt = nxt_reads()
                elif s == T.get("crs") and i == 1:
                    lg.wait(T["cr"])
                    a("""v_mov_b32 v153, v152
                         v_permlane32_swap_b32 v152, v153
                         v_add_f32 v152, v152, v153
                         v_mov_b32 v153, v152
                         v_permlane16_swap_b32 v152, v153
                         v_add_f32 v152, v152, v153
                         buffer_store_dword v152, v9, s[68:71], s79 offen sc1"""); T["cs"] = vm.issue(); T["cs_s"] = s
                else: run_bg(bgk)
            if role == "B" and "rs" in T and "rs_s" not in T: T["rs_s"] = s; T["cs_s"] = max(T.get("cs_s", 0), s)
        assert not Q and not bg and (role == "A" or flag_sent)
        if stamp: a("s_memtime s[96:97]")
        if tl:
            a("s_waitcnt lgkmcnt(0)\ns_sub_u32 s88, s88, s90\nv_writelane_b32 v240, s88, 16\ns_sub_u32 s88, s96, s90\nv_writelane_b32 v240, s88, 17")
            srd(a, 80, 18, 19, 0x100000, DBG_OFF + 0x10000)
            a("s_lshl_b32 s3, s2, 3\ns_add_u32 s3, s3, s20\ns_lshl_b32 s3, s3, 9\nv_lshlrev_b32 v241, 2, v1\nbuffer_store_dword v240, v241, s[80:83], s3 offen\nbuffer_store_dword v242, v241, s[80:83], s3 offen offset:256")
        def slow():
            a.label(f"K1_SLOW{U}")
            a("s_waitcnt vmcnt(0) ; hz:barrier")
            a(f"""v_lshlrev_b32 v168, 9, v20
                  v_lshl_add_u32 v168, v23, 2, v168
                  s_lshl_b32 s3, s28, 7
                  s_add_u32 s3, s3, {FIN}
                  v_add_u32 v168, s3, v168
                  s_mov_b32 s84, 0""")
            a.label(f"K1_SLOW{U}_R")
            a("""s_add_u32 s85, s84, 2 ; hz:barrier
                 v_readlane_b32 s76, v7, s84
                 v_readlane_b32 s77, v7, s85
                 s_lshl_b32 s76, s76, 6
                 s_lshl_b32 s77, s77, 6
                 buffer_load_dwordx4 v[128:131], v25, s[44:47], s76 offen
                 buffer_load_dwordx4 v[132:135], v25, s[44:47], s77 offen
                 s_waitcnt vmcnt(0)""")
            for x in row_job2(): a(x)
            a(f"ds_write_b32 v168, v164\nv_add_u32 v168, 8, v168\ns_add_u32 s84, s84, 4\ns_cmp_lt_u32 s84, 64\ns_cbranch_scc1 K1_SLOW{U}_R")
            a(f"""s_bitcmp1_b32 s28, 1
                  s_cselect_b32 s64, s{lo1}, s{lo0}
                  s_cselect_b32 s65, s{lo1+1}, s{lo0+1}
                  v_mul_u32_u24 v30, {stride}, v26
                  s_and_b32 s3, s28, 1
                  s_lshl_b32 s3, s3, 7
                  s_add_u32 s3, s3, s83
                  v_lshlrev_b32 v31, 4, v27
                  v_add3_u32 v30, v30, v31, s3
                  s_mov_b32 s76, 0""")
            for i in range(8): a(f"v_mov_b32 v{176+i}, 0")
            a.label(f"K1_SLOW{U}_C")
            a("s_nop 0 ; hz:barrier")
            for t in range(4):
                a(f"buffer_load_dwordx4 v[{136+4*t}:{139+4*t}], v30, s[64:67], s76 offen\ns_add_u32 s76, s76, {8*stride}")
            a("s_waitcnt vmcnt(0)")
            for x in col_sum4(): a(x)
            for i in range(8): a(f"v_add_f32 v{176+i}, v{176+i}, v{156+i}")
            a(f"s_cmp_lt_u32 s76, {512*stride}\ns_cbranch_scc1 K1_SLOW{U}_C")
            for i in range(8): a(f"v_mov_b32 v{156+i}, v{176+i}")
            for x in col_red(): a(x)
            a(f"ds_write_b64 v170, v[156:157]\ns_branch K1_BACK{U}")
        return slow

    def epi_reads(dft, lg):
        if not dft:
            a(f"s_lshl_b32 s3, s28, 7\ns_add_u32 s3, s3, {CS}\nv_lshl_add_u32 v164, v23, 4, s3")
            a(f"s_lshl_b32 s3, s27, 8\ns_add_u32 s3, s3, {FIN}\nv_lshl_add_u32 v165, v24, 2, s3")
            for rt in range(2):
                a(f"ds_read_b32 v{160+rt}, v165 offset:{rt*128}"); lg.issue()
                a(f"ds_read_b32 v{162+rt}, v165 offset:{512+rt*128}"); lg.issue()
            for p in range(2):
                for g in range(4):
                    r = 128 + (p * 4 + g) * 4
                    a(f"ds_read_b128 v[{r}:{r+3}], v164 offset:{p*512+g*32}"); lg.issue()
        else:
            a(f"s_lshl_b32 s3, s28, 7\ns_add_u32 s3, s3, {CS}\nv_lshl_add_u32 v164, v24, 2, s3")
            a(f"s_lshl_b32 s3, s27, 8\ns_add_u32 s3, s3, {FIN}\nv_lshl_add_u32 v165, v23, 4, s3")
            a("ds_read_b32 v160, v164"); lg.issue()
            a("ds_read_b32 v161, v164 offset:512"); lg.issue()
            for arr, base in ((1, 128), (2, 176), (3, 208)):
                for rt in range(2):
                    for g in range(4):
                        r = base + (rt * 4 + g) * 4
                        a(f"ds_read_b128 v[{r}:{r+3}], v165 offset:{arr*512+rt*128+g*32}"); lg.issue()
                        if lg.n - lg.done > 14: lg.wait(lg.n - 6)

    def stamps_out():
        if not stamp: return
        stamp_store(a, 0, "K1_END")

    a("s_cmp_lg_u32 s27, 0\ns_cbranch_scc1 K1_FB")
    main(False, "A")
    a.label("K1_FEPI")
    a("s_waitcnt lgkmcnt(0) ; hz:barrier\ns_setprio 0\ns_nop 7\ns_nop 7")
    a(f"s_mov_b32 s41, {fbits(K0C)}\ns_mov_b32 s42, {fbits(K1C)}")
    for rt in range(2):
        r = 162 + rt; b = 32 + rt * 4
        a(f"""v_mul_f32 v{b+3}, v{r}, v{r}
              v_mul_f32 v{b}, s41, v{r}
              v_mul_f32 v{b+1}, s42, v{r}
              v_rcp_f32 v{b+2}, v{b+3}
              v_mul_f32 v{b+1}, v{b+1}, v{b+3}""")
    a("s_lshl_b32 s3, s23, 1\ns_add_u32 s3, s3, s27\ns_mul_i32 s3, s3, 112\ns_lshl_b32 s31, s24, 3\ns_add_u32 s3, s3, s31\ns_lshl_b32 s31, s28, 1\ns_add_u32 s3, s3, s31\ns_lshl_b32 s38, s3, 11")
    for rt in range(2):
        m = 160 + rt; b = 32 + rt * 4
        for j in range(2):
            T = 40 + 0
            ops = [[] for _ in range(9)]
            for e in range(8):
                idx = j * 8 + e
                ag = 64 + (rt * 2) * 16 + idx; au = ag + 16
                cg_ = 128 + idx; cu = 144 + idx
                tg, tu, z = T + e, T + 8 + e, T + 16 + e
                seq = [f"v_fma_f32 v{tg}, -v{m}, v{cg_}, v{ag}",
                       f"v_fma_f32 v{tu}, -v{m}, v{cu}, v{au}",
                       f"v_mul_f32 v{z}, v{tg}, v{tg}",
                       f"v_fma_f32 v{z}, v{z}, v{b+1}, v{b}",
                       f"v_mul_f32 v{z}, v{z}, v{tg}",
                       f"v_exp_f32 v{z}, v{z}",
                       f"v_mul_f32 v{tu}, v{tu}, v{tg}",
                       f"v_fma_f32 v{z}, v{z}, v{b+2}, v{b+2}",
                       f"v_rcp_f32 v{z}, v{z}"]
                for k_, s_ in enumerate(seq): ops[k_].append(s_)
            for k_ in range(9):
                for s_ in ops[k_]: a(s_)
            for e in range(8): a(f"v_mul_f32 v{T+8+e}, v{T+8+e}, v{T+16+e}")
            O = 164 + 4 * ((rt * 2 + j) & 1)
            for q in range(4): a(f"v_cvt_pk_bf16_f32 v{O+q}, v{T+8+2*q}, v{T+9+2*q}")
            a(f"buffer_store_dwordx4 v[{O}:{O+3}], v25, s[52:55], s38 offen offset:{j*2048+rt*1024}" + ST1)
    a("s_cmp_lg_u32 s2, 0\ns_cbranch_scc1 K1_FFN_DONE")
    srd(a, 44, 18, 19, F_SZ, F_OFF)
    a("v_mov_b32 v8, 0\nv_mov_b32 v9, 0\nv_mov_b32 v10, 0\nv_mov_b32 v11, 0\nv_lshlrev_b32 v12, 4, v0")
    a("buffer_store_dwordx4 v[8:11], v12, s[44:47], 0 offen")
    a.label("K1_FFN_DONE")
    stamps_out()
    a("s_endpgm")
    a.label("K1_FB")
    a("s_nop 4 ; hz:barrier")
    slowF = main(False, "B")
    a("s_branch K1_FEPI")
    slowF()
    a.label("K1_DFT")
    a("s_nop 4 ; hz:barrier")
    a("s_cmp_lg_u32 s27, 0\ns_cbranch_scc1 K1_DB")
    main(True, "A")
    a.label("K1_DEPI")
    a("s_waitcnt lgkmcnt(0) ; hz:barrier\ns_setprio 0\ns_nop 7\ns_nop 7")
    lg = Cnt(a, "lgkmcnt", 15)
    a("s_cmp_eq_u32 s24, 14\ns_cselect_b32 s3, 0, 1\ns_add_u32 s3, s3, s28\nv_add_u32 v162, s3, v24\nv_cmp_eq_u32 vcc, 0, v162")
    a("s_mul_i32 s39, s20, 9216\nv_mul_u32_u24 v163, 144, v24\nv_lshl_add_u32 v163, v23, 4, v163\nv_add_u32 v163, s39, v163")
    for rt in range(2):
        for p in range(2):
            for j in range(2):
                T = 32 + 8 * ((p * 2 + j) & 1)
                for e in range(8):
                    idx = j * 8 + e
                    ac = 64 + (rt * 2 + p) * 16 + idx
                    a(f"v_mul_f32 v{T+e}, v{ac}, v{128+rt*16+idx}")
                for e in range(8):
                    idx = j * 8 + e
                    a(f"v_fma_f32 v{T+e}, -v{160+p}, v{176+rt*16+idx}, v{T+e}")
                if p == 1:
                    for e in range(8):
                        idx = j * 8 + e
                        a(f"v_cndmask_b32 v{T+e}, v{T+e}, v{208+rt*16+idx}, vcc")
                O = 48 + 4 * ((p * 2 + j) & 3)
                for q in range(4): a(f"v_cvt_pk_bf16_f32 v{O+q}, v{T+2*q}, v{T+1+2*q}")
                a(f"ds_write_b128 v163, v[{O}:{O+3}] offset:{p*32*144 + (4*rt+2*j)*16}"); lg.issue()
    a("v_lshrrev_b32 v164, 3, v1\nv_and_b32 v165, 7, v1\nv_mul_u32_u24 v166, 144, v164\nv_lshl_add_u32 v166, v165, 4, v166\nv_add_u32 v166, s39, v166")
    a("v_lshlrev_b32 v167, 13, v164\nv_lshl_add_u32 v167, v165, 4, v167")
    a("""s_sub_u32 s3, s24, 14
         s_lshl_b32 s3, s3, 7
         s_lshl_b32 s31, s28, 5
         s_add_u32 s3, s3, s31
         s_lshl_b32 s38, s3, 13
         s_and_b32 s3, s23, 1
         s_lshl_b32 s3, s3, 11
         s_add_u32 s38, s38, s3
         s_lshr_b32 s3, s23, 1
         s_lshl_b32 s3, s3, 8
         s_add_u32 s38, s38, s3
         s_lshl_b32 s3, s27, 7
         s_add_u32 s38, s38, s3""")
    lg.wait(lg.n)
    toks = []
    for i in range(8):
        r = 64 + 4 * i
        a(f"ds_read_b128 v[{r}:{r+3}], v166 offset:{i*1152}"); toks.append(lg.issue())
    for i in range(8):
        r = 64 + 4 * i
        lg.wait(toks[i])
        a(f"s_add_u32 s3, s38, {(i & 3) * 8 * 8192 + (i >> 2) * 4096}")
        a(f"buffer_store_dwordx4 v[{r}:{r+3}], v167, s[52:55], s3 offen" + ST1)
    stamps_out()
    a("s_endpgm")
    a.label("K1_DB")
    a("s_nop 4 ; hz:barrier")
    slowD = main(True, "B")
    a("s_branch K1_DEPI")
    slowD()
    a.label("K1_END")
    lines, n = hz.fix(a.l)
    return "\n".join(lines), 244

K2_LDS = 4 * 64 * 272
def gen_k2(cfg):
    a = Asm()
    stamp = cfg.get("stamp", False); pre = cfg.get("pre2", 13)
    vm = Cnt(a, "vmcnt", 63); lg = Cnt(a, "lgkmcnt", 15)
    a("s_cmp_ge_u32 s2, 256\ns_cbranch_scc1 K2_END")
    a("s_load_dwordx2 s[4:5], s[0:1], 0\ns_load_dwordx2 s[6:7], s[0:1], 72\ns_load_dwordx2 s[18:19], s[0:1], 88")
    if stamp: a("s_memtime s[90:91]\ns_memrealtime s[92:93]\ns_mov_b64 s[86:87], 0\ns_mov_b64 s[88:89], 0")
    a("v_lshrrev_b32 v2, 6, v0\nv_and_b32 v1, 63, v0\nv_lshlrev_b32 v3, 4, v1\nv_readfirstlane_b32 s20, v2")
    a("s_and_b32 s21, s2, 7\ns_lshr_b32 s22, s2, 3\ns_lshl_b32 s23, s21, 2\ns_lshr_b32 s3, s22, 3\ns_add_u32 s23, s23, s3\ns_and_b32 s24, s22, 7")
    a("s_mul_i32 s3, s20, 28\ns_mul_i32 s25, s23, 112\ns_add_u32 s25, s25, s3\ns_lshl_b32 s25, s25, 11\ns_mul_i32 s26, s24, 112\ns_add_u32 s26, s26, s3\ns_lshl_b32 s26, s26, 11\ns_lshl_b32 s27, s2, 13")
    a("s_waitcnt lgkmcnt(0)")
    srd(a, 44, 18, 19, H_SZ, H_OFF)
    srd(a, 48, 18, 19, WT_SZ, WT_OFF)
    srd(a, 52, 18, 19, Z_SZ, Z_OFF)
    srd(a, 56, 18, 19, Y_SZ, Y_OFF)
    srd(a, 60, 18, 19, F_SZ, F_OFF)
    srd(a, 64, 4, 5, 0x200000)
    srd(a, 68, 6, 7, 0x200000)
    ZR, ZI = 64, 80
    a("s_add_u32 s28, s27, 4096")
    for f in range(4):
        a(f"buffer_load_dwordx4 v[{ZR+4*f}:{ZR+4*f+3}], v3, s[52:55], s27 offen offset:{f*1024}"); vm.issue()
    for f in range(4):
        a(f"buffer_load_dwordx4 v[{ZI+4*f}:{ZI+4*f+3}], v3, s[52:55], s28 offen offset:{f*1024}"); ztok = vm.issue()
    ktok = {}
    def loads(ks):
        r = (ks % 16) * 16
        o = (ks & 1) * 2048
        if ks and not (ks & 1): a("s_add_u32 s25, s25, 4096\ns_add_u32 s26, s26, 4096")
        a(f"buffer_load_dwordx4 a[{r}:{r+3}], v3, s[48:51], s26 offen offset:{o}"); vm.issue()
        a(f"buffer_load_dwordx4 a[{r+8}:{r+11}], v3, s[44:47], s25 offen offset:{o}"); vm.issue()
        a(f"buffer_load_dwordx4 a[{r+4}:{r+7}], v3, s[48:51], s26 offen offset:{o+1024}"); vm.issue()
        a(f"buffer_load_dwordx4 a[{r+12}:{r+15}], v3, s[44:47], s25 offen offset:{o+1024}"); ktok[ks] = vm.issue()
    nxt = 0
    for ks in range(pre): loads(ks); nxt += 1
    a("v_and_b32 v4, 15, v1\nv_lshrrev_b32 v5, 4, v1\ns_lshl_b32 s3, s20, 4\nv_add_u32 v6, s3, v4\ns_mov_b32 s40, 0x80008000")
    FR, FI, FN = 96, 104, 112
    TW = 120
    GC, GS = 136, 144
    tmp = 152
    a("v_lshlrev_b32 v7, 3, v5\nv_mul_u32_u24 v7, v7, v6")
    for ks in range(2):
        for j in range(8):
            t = tmp + j
            a(f"v_mad_u32_u24 v{t}, v6, {32*ks+j}, v7" if 32 * ks + j <= 64 else "ERR")
        for j in range(8): a(f"v_and_b32 v{tmp+j}, 63, v{tmp+j}")
        for j in range(8): a(f"v_cvt_f32_u32 v{tmp+j}, v{tmp+j}")
        for j in range(8): a(f"v_mul_f32 v{tmp+j}, 0x3c800000, v{tmp+j}")
        for j in range(8): a(f"v_sin_f32 v{tmp+8+j}, v{tmp+j}")
        for j in range(8): a(f"v_cos_f32 v{tmp+j}, v{tmp+j}")
        for i in range(4): a(f"v_cvt_pk_bf16_f32 v{FN+4*ks+i}, v{tmp+8+2*i}, v{tmp+9+2*i}")
        for i in range(4): a(f"v_cvt_pk_bf16_f32 v{FR+4*ks+i}, v{tmp+2*i}, v{tmp+1+2*i}")
        for i in range(4): a(f"v_xor_b32 v{FI+4*ks+i}, s40, v{FN+4*ks+i}")
    a("v_lshlrev_b32 v7, 2, v5\nv_mul_u32_u24 v7, v7, v6")
    for i in range(8):
        tile, r = i >> 2, i & 3
        a(f"v_mad_u32_u24 v{tmp+i}, v6, {16*tile+r}, v7")
    for i in range(8): a(f"v_cvt_f32_u32 v{tmp+i}, v{tmp+i}")
    for i in range(8): a(f"v_mul_f32 v{tmp+i}, 0x3a000000, v{tmp+i}")
    for i in range(8): a(f"v_cos_f32 v{TW+i}, v{tmp+i}")
    for i in range(8): a(f"v_sin_f32 v{TW+8+i}, v{tmp+i}")
    for t2 in range(2):
        a(f"v_add_u32 v8, {16*t2}, v4\nv_lshlrev_b32 v7, 2, v5\nv_mul_u32_u24 v7, v7, v8")
        for i in range(8):
            tile, r = i >> 2, i & 3
            a(f"v_mad_u32_u24 v{tmp+i}, v8, {16*tile+r}, v7")
        for i in range(8): a(f"v_and_b32 v{tmp+i}, 31, v{tmp+i}")
        for i in range(8): a(f"v_cvt_f32_u32 v{tmp+i}, v{tmp+i}")
        for i in range(8): a(f"v_mul_f32 v{tmp+i}, 0x3d000000, v{tmp+i}")
        for i in range(8): a(f"v_sin_f32 v{tmp+8+i}, v{tmp+i}")
        for i in range(8): a(f"v_cos_f32 v{tmp+i}, v{tmp+i}")
        for i in range(4): a(f"v_cvt_pk_bf16_f32 v{GS+4*t2+i}, v{tmp+8+2*i}, v{tmp+9+2*i}")
        for i in range(4): a(f"v_cvt_pk_bf16_f32 v{GC+4*t2+i}, v{tmp+2*i}, v{tmp+1+2*i}")
    a("v_lshlrev_b32 v9, 8, v4\nv_lshl_add_u32 v9, v5, 4, v9\ns_lshl_b32 s3, s20, 6\nv_add_u32 v9, s3, v9")
    a("s_mov_b32 s29, s27")
    a("s_mov_b32 s30, 0")
    vm.wait(ztok)
    if stamp: a("s_memtime s[94:95]")
    SV = 168
    a("s_cmp_lg_u32 s2, 0\ns_cbranch_scc1 K2_FFT")
    for i in range(16): a(f"v_mov_b32 v{SV+i}, v{ZI+i}")
    for i in range(16): a(f"v_mov_b32 v{ZI+i}, 0")
    a.label("K2_FFT")
    a("s_nop 1 ; hz:barrier")
    YR, YI = 184, 192
    for tile in range(2):
        for ks in range(2):
            f = tile * 2 + ks
            c = "0" if ks == 0 else f"v[{YR+4*tile}:{YR+4*tile+3}]"
            a(f"v_mfma_f32_16x16x32_bf16 v[{YR+4*tile}:{YR+4*tile+3}], v[{ZR+4*f}:{ZR+4*f+3}], v[{FR+4*ks}:{FR+4*ks+3}], {c}")
            c = "0" if ks == 0 else f"v[{YI+4*tile}:{YI+4*tile+3}]"
            a(f"v_mfma_f32_16x16x32_bf16 v[{YI+4*tile}:{YI+4*tile+3}], v[{ZR+4*f}:{ZR+4*f+3}], v[{FI+4*ks}:{FI+4*ks+3}], {c}")
        for ks in range(2):
            f = tile * 2 + ks
            a(f"v_mfma_f32_16x16x32_bf16 v[{YR+4*tile}:{YR+4*tile+3}], v[{ZI+4*f}:{ZI+4*f+3}], v[{FN+4*ks}:{FN+4*ks+3}], v[{YR+4*tile}:{YR+4*tile+3}]")
            a(f"v_mfma_f32_16x16x32_bf16 v[{YI+4*tile}:{YI+4*tile+3}], v[{ZI+4*f}:{ZI+4*f+3}], v[{FR+4*ks}:{FR+4*ks+3}], v[{YI+4*tile}:{YI+4*tile+3}]")
    for i in range(8): a(f"v_mul_f32 v{tmp+i}, v{YR+i}, v{TW+i}")
    for i in range(8): a(f"v_mul_f32 v{tmp+8+i}, v{YI+i}, v{TW+i}")
    for i in range(8): a(f"v_fmac_f32 v{tmp+i}, v{YI+i}, v{TW+8+i}")
    for i in range(8): a(f"v_fma_f32 v{tmp+8+i}, -v{YR+i}, v{TW+8+i}, v{tmp+8+i}")
    PR, PI = 200, 204
    for i in range(4): a(f"v_cvt_pk_bf16_f32 v{PR+i}, v{tmp+2*i}, v{tmp+1+2*i}")
    for i in range(4): a(f"v_cvt_pk_bf16_f32 v{PI+i}, v{tmp+8+2*i}, v{tmp+9+2*i}")
    OUT = 208
    for t2 in range(2):
        a(f"v_mfma_f32_16x16x32_bf16 v[{OUT+4*t2}:{OUT+4*t2+3}], v[{PR}:{PR+3}], v[{GC+4*t2}:{GC+4*t2+3}], 0")
    for t2 in range(2):
        a(f"v_mfma_f32_16x16x32_bf16 v[{OUT+4*t2}:{OUT+4*t2+3}], v[{PI}:{PI+3}], v[{GS+4*t2}:{GS+4*t2+3}], v[{OUT+4*t2}:{OUT+4*t2+3}]")
    a("s_add_u32 s31, s29, 4096")
    a(f"buffer_store_dwordx4 v[{OUT}:{OUT+3}], v9, s[56:59], s29 offen sc1")
    a(f"buffer_store_dwordx4 v[{OUT+4}:{OUT+7}], v9, s[56:59], s31 offen sc1")
    a("s_cmp_lg_u32 s2, 0\ns_cbranch_scc1 K2_FFT_DONE\ns_cmp_lg_u32 s30, 0\ns_cbranch_scc1 K2_FFT_W0")
    for i in range(16): a(f"v_mov_b32 v{ZR+i}, v{SV+i}")
    a(f"s_mov_b32 s30, 1\ns_mov_b32 s29, {256*8192}\ns_branch K2_FFT")
    a.label("K2_FFT_W0")
    a("s_waitcnt vmcnt(0)\nv_mov_b32 v10, 1\ns_lshl_b32 s3, s20, 2\ns_add_u32 s3, s3, 4096\nv_mov_b32 v11, s3\nbuffer_store_dword v10, v11, s[60:63], 0 offen sc1\ns_waitcnt vmcnt(0)")
    a.label("K2_FFT_DONE")
    a("s_nop 1 ; hz:barrier")
    vm.issue(); ytok = vm.issue()
    ACC = 0 + 0
    AC = [216 - 216 + 64 + 16 * i for i in range(4)]
    flag_done = False
    polled = False
    for ks in range(28):
        vm.wait(ktok[ks])
        if not flag_done and vm.done >= ytok:
            a("v_mov_b32 v10, 1\ns_lshl_b32 s3, s2, 4\ns_lshl_b32 s31, s20, 2\ns_add_u32 s3, s3, s31\nv_mov_b32 v11, s3\nbuffer_store_dword v10, v11, s[60:63], 0 offen sc1"); vm.issue()
            flag_done = True
        r = (ks % 16) * 16
        for et in range(2):
            for tt in range(2):
                ac = AC[et * 2 + tt]
                c = "0" if ks == 0 else f"v[{ac}:{ac+15}]"
                a(f"v_mfma_f32_32x32x16_bf16 v[{ac}:{ac+15}], a[{r+4*et}:{r+4*et+3}], a[{r+8+4*tt}:{r+11+4*tt}], {c}")
        while nxt < 28 and nxt <= ks + 15 and vm.n - vm.done + 4 <= 60:
            loads(nxt); nxt += 1
    assert flag_done
    if stamp: a("s_memtime s[96:97]")
    a("""v_lshrrev_b32 v12, 2, v1
         v_and_b32 v13, 3, v1
         s_lshl_b32 s3, s23, 6
         s_lshl_b32 s31, s20, 4
         s_add_u32 s3, s3, s31
         v_add_u32 v14, s3, v12
         v_lshlrev_b32 v14, 10, v14
         v_lshl_add_u32 v14, v13, 4, v14
         s_lshl_b32 s32, s24, 7""")
    a("buffer_load_dwordx4 v[128:131], v14, s[64:67], s32 offen"); vm.issue()
    a("buffer_load_dwordx4 v[132:135], v14, s[64:67], s32 offen offset:64"); xtok = vm.issue()
    a("""v_and_b32 v15, 31, v1
         v_lshrrev_b32 v16, 5, v1
         s_lshl_b32 s3, s24, 6
         s_lshr_b32 s31, s20, 1
         s_lshl_b32 s31, s31, 5
         s_add_u32 s33, s3, s31
         v_add_u32 v17, s33, v15
         v_sub_u32 v18, 512, v17
         v_min_u32 v17, v17, v18
         v_lshlrev_b32 v17, 4, v17""")
    a("s_mov_b32 s36, 0")
    a.label("K2_POLL")
    if cfg.get("pollmax", 0):
        a(f"s_add_u32 s36, s36, 1\ns_cmp_gt_u32 s36, {cfg['pollmax']}\ns_cbranch_scc1 K2_POLL_OK")
    a("""buffer_load_dwordx4 v[20:23], v17, s[60:63], 0 offen sc1
         s_waitcnt vmcnt(0)
         v_and_b32 v20, v20, v21
         v_and_b32 v22, v22, v23
         v_and_b32 v20, v20, v22
         v_cmp_ne_u32 vcc, 1, v20
         s_cbranch_vccz K2_POLL_OK
         s_sleep 2
         s_branch K2_POLL""")
    a.label("K2_POLL_OK")
    a("s_nop 1 ; hz:barrier")
    vm.done = vm.n
    a("""s_lshl_b32 s3, s23, 6
         s_and_b32 s31, s20, 1
         s_lshl_b32 s31, s31, 5
         s_add_u32 s3, s3, s31
         v_add_u32 v18, s3, v15
         v_sub_u32 v19, 2048, v18
         v_and_b32 v19, 2047, v19
         v_lshlrev_b32 v24, 2, v16
         v_add_u32 v24, s33, v24
         v_sub_u32 v25, 512, v24
         s_movk_i32 s34, 8192
         s_movk_i32 s3, -8192
         s_cmp_ge_u32 s24, 4
         s_cselect_b64 vcc, -1, 0
         s_cselect_b32 s34, s3, s34
         v_cndmask_b32 v18, v18, v19, vcc
         v_cndmask_b32 v24, v24, v25, vcc
         v_lshlrev_b32 v24, 13, v24
         v_lshl_add_u32 v24, v18, 2, v24""")
    YV = 136
    for g in range(4):
        for r in range(4):
            i = g * 4 + r
            if i == 0: a("v_mov_b32 v26, v24")
            else: a(f"s_mul_i32 s3, s34, {8*g+r}\nv_add_u32 v26, s3, v24")
            a(f"buffer_load_dword v{YV+i}, v26, s[56:59], 0 offen sc1"); vm.issue()
    a(f"s_mul_i32 s35, s20, {64*272}\nv_mul_u32_u24 v27, 272, v15\nv_lshl_add_u32 v27, v16, 4, v27\nv_add_u32 v27, s35, v27")
    def wr_tile(ti):
        et, tt = ti >> 1, ti & 1
        for g in range(4):
            ac = AC[ti] + 4 * g
            a(f"ds_write_b128 v27, v[{ac}:{ac+3}] offset:{tt*32*272 + et*128 + g*32}"); lg.issue()
    for w in range(4):
        a(f"s_cmp_lg_u32 s20, {w}\ns_cbranch_scc1 K2_W{w}")
        for ti in range(4):
            if ti != w: wr_tile(ti)
        a("s_waitcnt vmcnt(0)")
        for i in range(16): a(f"v_add_f32 v{AC[w]+i}, v{AC[w]+i}, v{YV+i}")
        wr_tile(w)
        a("s_branch K2_WD")
        a.label(f"K2_W{w}")
        a("s_nop 0 ; hz:barrier")
    a.label("K2_WD")
    a("s_waitcnt lgkmcnt(0) ; hz:barrier\ns_barrier")
    a(f"s_lshl_b32 s3, s20, 4\nv_add_u32 v28, s3, v12\nv_mul_u32_u24 v28, 272, v28\nv_lshl_add_u32 v28, v13, 5, v28")
    R = 64
    for half in range(2):
        for p in range(4):
            for q in range(2):
                r = R + ((half * 4 + p) * 2 + q) * 4
                off = p * 64 * 272 + half * 128 + q * 16
                a(f"ds_read_b128 v[{r}:{r+3}], v28 offset:{off}")
    for half in range(2):
        a(f"s_waitcnt lgkmcnt({8 if half == 0 else 0})")
        b = R + half * 32
        for i in range(8): a(f"v_add_f32 v{b+i}, v{b+i}, v{b+8+i}")
        for i in range(8): a(f"v_add_f32 v{b+16+i}, v{b+16+i}, v{b+24+i}")
        x = 128 + 4 * half
        for i in range(4): a(f"v_lshlrev_b32 v{160+2*i}, 16, v{x+i}\nv_and_b32 v{161+2*i}, 0xffff0000, v{x+i}")
        for i in range(8): a(f"v_add_f32 v{b+i}, v{b+i}, v{b+16+i}")
        for i in range(8): a(f"v_add_f32 v{b+i}, v{b+i}, v{160+i}")
        O = 168 + 4 * half
        for i in range(4): a(f"v_cvt_pk_bf16_f32 v{O+i}, v{b+2*i}, v{b+1+2*i}")
        a(f"buffer_store_dwordx4 v[{O}:{O+3}], v14, s[68:71], s32 offen offset:{64*half}")
    if stamp: stamp_store(a, 1, "K2_END")
    a.label("K2_END")
    lines, n = hz.fix(a.l)
    return "\n".join(lines), 512

HEADER = open("parallel_sum__spectral_fnet__geglu_ffn__prompt.s.ref").read().split("; Override launch")[0]

def build(cfg):
    k1, v1 = gen_k1(cfg)
    k2, v2 = gen_k2(cfg)
    out = HEADER
    out += f"; @launch kernel=fnet_g1_kernel grid=(256,1,1) block=(512,1,1) lds={K1_LDS}\n"
    out += f"; @launch kernel=fnet_g2_kernel grid=(256,1,1) block=(256,1,1) lds={K2_LDS}\n"
    out += HDR + kern("fnet_g1_kernel", k1) + kern("fnet_g2_kernel", k2)
    out += '.section .rodata,"a"\n' + kd("fnet_g1_kernel", v1, 102, 244) + kd("fnet_g2_kernel", 512, 102, 256)
    return out

if __name__ == "__main__":
    cfg = {}
    for kv in sys.argv[2:]:
        k, v = kv.split("=")
        cfg[k] = int(v) if v.lstrip("-").isdigit() else v
    open(sys.argv[1], "w").write(build(cfg))
```

```python
import sys, math, re
from asmlib import Asm, kd, kern, HDR
import hz

KNAME = "parallel_sum__spectral_fnet__geglu_ffn__prompt_kernel"
H_OFF, H_SZ = 0x0, 32 * 112 * 2 * 1024
WT_OFF, WT_SZ = 0x800000, 8 * 112 * 2 * 1024
CP = 8192 + 128
Z_OFF, Z_SZ = 0xA00000, 256 * CP
Y_OFF, Y_SZ = 0xC40000, 257 * CP
Y_REL, ZY_SZ = Y_OFF - Z_OFF, Y_OFF + Y_SZ - Z_OFF
F_OFF = 0xF00000
RT_REL, CT_REL, GO_REL, HF_REL, FT_SZ = 0x0, 0x10000, 0x20000, 0x40000, 0x80000
DBG_OFF = 0x1000000
OOB = 0x1000000

class Cnt:
    def __init__(self, a, name, cap):
        self.a, self.name, self.cap = a, name, cap
        self.n = 0
        self.done = 0
    def issue(self):
        self.n += 1
        return self.n
    def need(self, tok):
        if tok is None or tok <= self.done: return None
        return self.n - tok
    def wait(self, tok):
        k = self.need(tok)
        if k is None: return
        k = min(k, self.cap)
        self.a(f"s_waitcnt {self.name}({k})")
        self.done = max(self.done, self.n - k)

def wait2(a, vm, vt, lg, lt):
    parts = []
    k = vm.need(vt)
    if k is not None:
        k = min(k, vm.cap); parts.append(f"vmcnt({k})"); vm.done = max(vm.done, vm.n - k)
    k = lg.need(lt)
    if k is not None:
        k = min(k, lg.cap); parts.append(f"lgkmcnt({k})"); lg.done = max(lg.done, lg.n - k)
    if parts: a("s_waitcnt " + " ".join(parts))

def srd(a, d, lo, hi, size, off=0):
    if off:
        a(f"s_add_u32 s{d}, s{lo}, {off}\ns_addc_u32 s{d+1}, s{hi}, 0")
    else:
        a(f"s_mov_b32 s{d}, s{lo}\ns_mov_b32 s{d+1}, s{hi}")
    a(f"s_mov_b32 s{d+2}, {size}\ns_mov_b32 s{d+3}, 0x20000")

def stamp_store(a, endlabel):
    a("s_memtime s[98:99]\ns_memrealtime s[100:101]\ns_waitcnt lgkmcnt(0)")
    for r in (94, 96, 98, 86, 88, 84): a(f"s_sub_u32 s{r}, s{r}, s90")
    srd(a, 44, 18, 19, 65536, DBG_OFF)
    a("v_mov_b32 v8, s92\nv_mov_b32 v9, s100\nv_mov_b32 v10, s98\nv_mov_b32 v11, s94\nv_mov_b32 v12, s96\nv_mov_b32 v13, s86\nv_mov_b32 v14, s88\nv_mov_b32 v15, s84")
    a(f"s_lshl_b32 s3, s2, 5\ns_lshr_b32 s31, s20, 2\ns_lshl_b32 s31, s31, 13\ns_add_u32 s3, s3, s31\nv_mov_b32 v16, s3")
    a(f"s_and_b32 s3, s20, 3\ns_cmp_lg_u32 s3, 0\ns_cbranch_scc1 {endlabel}\nbuffer_store_dwordx4 v[8:11], v16, s[44:47], 0 offen\nbuffer_store_dwordx4 v[12:15], v16, s[44:47], 0 offen offset:16")

WB, WSL = 49152, 16384
SCR = WB + 6 * WSL
FIN = SCR + 8192
CS = FIN + 2048
JS = CS + 1024
K_LDS = JS + 2048
PL = 64 * 272
K0C = -2.0 * math.sqrt(2.0 / math.pi) * math.log2(math.e)
K1C = K0C * 0.044715
def fbits(x):
    import struct
    return "0x%08x" % struct.unpack("<I", struct.pack("<f", x))[0]
WR0 = 144

def rm(s):
    def f(n): return n + 8 if 136 <= n <= 180 else n
    s = re.sub(r"v\[(\d+):(\d+)\]", lambda m: f"v[{f(int(m.group(1)))}:{f(int(m.group(2)))}]", s)
    return re.sub(r"\bv(\d+)\b", lambda m: f"v{f(int(m.group(1)))}", s)

def gen(cfg):
    a = Asm()
    SC = {0: "", 1: " sc1", 2: " nt", 3: " sc0 sc1"}
    LDW = SC[cfg.get("ldw", 1)]; LDH = SC[cfg.get("ldh", 1)]
    ST1 = SC[cfg.get("st1", 1)]; STH = SC[cfg.get("sth", 1)]
    mapping = cfg.get("map1", "A"); stamp = cfg.get("stamp", False)
    POLL_S = cfg.get("poll_s", 10); PMAX = cfg.get("pollmax", 2000000)
    a("s_cmp_ge_u32 s2, 256\ns_cbranch_scc1 K_END")
    a("""s_load_dwordx2 s[4:5], s[0:1], 0
         s_load_dwordx4 s[8:11], s[0:1], 24
         s_load_dwordx4 s[12:15], s[0:1], 48
         s_load_dwordx2 s[16:17], s[0:1], 64
         s_load_dwordx2 s[72:73], s[0:1], 80
         s_load_dwordx2 s[18:19], s[0:1], 88""")
    if stamp: a("s_memtime s[90:91]\ns_memrealtime s[92:93]")
    a("v_lshrrev_b32 v2, 6, v0\nv_and_b32 v1, 63, v0\ns_mov_b32 s40, 0xffff0000\nv_readfirstlane_b32 s20, v2")
    a("s_and_b32 s21, s2, 7\ns_lshr_b32 s22, s2, 3")
    if mapping == "A":
        a("s_and_b32 s23, s21, 1\ns_lshl_b32 s23, s23, 3\ns_and_b32 s3, s22, 7\ns_add_u32 s23, s23, s3")
        a("s_lshr_b32 s24, s21, 1\ns_lshl_b32 s24, s24, 2\ns_lshr_b32 s3, s22, 3\ns_add_u32 s24, s24, s3")
    else:
        a("s_lshl_b32 s23, s21, 1\ns_and_b32 s3, s22, 1\ns_add_u32 s23, s23, s3\ns_lshr_b32 s24, s22, 1")
    a("s_lshr_b32 s27, s20, 2\ns_and_b32 s28, s20, 3")
    a("""v_and_b32 v20, 3, v1
         v_lshrrev_b32 v21, 2, v1
         v_lshrrev_b32 v22, 4, v1
         v_lshrrev_b32 v26, 3, v1
         v_and_b32 v27, 7, v1
         v_lshlrev_b32 v25, 4, v1""")
    a("s_mov_b32 s46, 0x200000\ns_mov_b32 s47, 0x20000\ns_mov_b32 s74, 256\ns_mov_b32 s75, 0x20000\nv_lshlrev_b32 v10, 2, v1")
    a("s_cmp_ge_u32 s24, 14\ns_cbranch_scc1 K1_DFT")

    def L(txt): return [x.strip() for x in txt.split("\n") if x.strip()]

    def setup_frag():
        a("v_lshrrev_b32 v23, 5, v1\nv_and_b32 v24, 31, v1")
        a("""v_lshrrev_b32 v14, 1, v24
             v_and_b32 v14, 7, v14
             v_xor_b32 v14, v14, v23
             v_lshlrev_b32 v14, 4, v14
             v_lshlrev_b32 v15, 7, v24
             s_lshl_b32 s3, s27, 13
             v_add3_u32 v14, v14, v15, s3
             v_xor_b32 v15, 32, v14
             v_xor_b32 v16, 64, v14
             v_xor_b32 v17, 0x60, v14""")
        a(f"""v_and_b32 v29, 3, v21
              v_lshlrev_b32 v29, 6, v29
              v_and_b32 v5, 1, v22
              v_lshlrev_b32 v5, 5, v5
              v_lshlrev_b32 v6, 3, v20
              v_add3_u32 v29, v29, v5, v6
              v_lshlrev_b32 v5, 9, v23
              s_lshl_b32 s3, s28, 11
              s_add_u32 s3, s3, {WB}
              v_add3_u32 v5, v29, v5, s3
              v_add_u32 v6, {3*WSL}, v5""")
        srd(a, 60, 18, 19, WT_SZ, WT_OFF)
        a("s_and_b32 s3, s22, 7\ns_mul_i32 s3, s3, 112\ns_mul_i32 s43, s20, 14\ns_add_u32 s43, s43, s3\ns_lshl_b32 s43, s43, 11")

    def ln_finish(su, sq, al, sel):
        return L(f"""v_mul_f32 v164, 0x3b000000, {su}
                 v_mul_f32 v166, 0x3b000000, {sq}
                 v_fma_f32 v166, -v164, v164, v166
                 v_max_f32 v166, 0, v166
                 v_cvt_pk_bf16_f32 v167, v164, v166
                 v_lshlrev_b32 v164, 16, v167
                 v_and_b32 v166, s40, v167
                 v_add_f32 v166, 0x3727c5ac, v166
                 v_cvt_pk_bf16_f32 v166, v166, v166
                 v_and_b32 v166, s40, v166
                 v_sqrt_f32 v166, v166
                 v_cmp_eq_u32 vcc, 1, {sel}
                 v_cvt_pk_bf16_f32 v166, v166, v166
                 v_and_b32 v166, s40, v166
                 v_rcp_f32 v166, v166
                 v_cmp_eq_u32 s[80:81], 2, {sel}
                 v_mul_f32 v167, v164, v166
                 v_mul_f32 v165, {al}, v166
                 v_cndmask_b32 v164, v164, v166, vcc
                 v_cmp_eq_u32 vcc, 3, {sel}
                 v_cndmask_b32 v164, v164, v167, s[80:81]
                 v_cndmask_b32 v164, v164, v165, vcc""")
    def row_part(S, T, O):
        ops = []
        for i in range(4):
            ops += [f"v_lshlrev_b32 v{T+2*i}, 16, v{S+i}", f"v_and_b32 v{T+1+2*i}, s40, v{S+i}"]
        ops += L(f"""v_add_f32 v{O}, v{T}, v{T+2}
                    v_add_f32 v{O+1}, v{T+1}, v{T+3}
                    v_mul_f32 v{O+2}, v{T}, v{T}
                    v_mul_f32 v{T+8}, v{T+1}, v{T+1}
                    v_add_f32 v{O}, v{O}, v{T+4}
                    v_add_f32 v{O+1}, v{O+1}, v{T+5}
                    v_fmac_f32 v{O+2}, v{T+2}, v{T+2}
                    v_fmac_f32 v{T+8}, v{T+3}, v{T+3}
                    v_add_f32 v{O}, v{O}, v{T+6}
                    v_add_f32 v{O+1}, v{O+1}, v{T+7}
                    v_fmac_f32 v{O+2}, v{T+4}, v{T+4}
                    v_fmac_f32 v{T+8}, v{T+5}, v{T+5}
                    v_add_f32 v{T+9}, v{O}, v{O+1}
                    v_fmac_f32 v{O+2}, v{T+6}, v{T+6}
                    v_fmac_f32 v{T+8}, v{T+7}, v{T+7}
                    v_sub_f32 v{O+1}, v{O}, v{O+1}
                    v_mov_b32 v{O}, v{T+9}
                    v_add_f32 v{O+2}, v{O+2}, v{T+8}""")
        return ops
    def row_job2():
        ops = row_part(128, 136, 146) + row_part(132, 136, 149)
        ops += L("""v_permlane32_swap_b32 v146, v149
                    v_permlane32_swap_b32 v147, v150
                    v_permlane32_swap_b32 v148, v151
                    v_add_f32 v146, v146, v149
                    v_add_f32 v147, v147, v150
                    v_add_f32 v148, v148, v151
                    v_permlane16_swap_b32 v146, v147
                    v_mov_b32 v149, v148
                    v_add_f32 v146, v146, v147
                    v_permlane16_swap_b32 v148, v149
                    v_add_f32 v148, v148, v149""")
        for r in (8, 4, 2, 1):
            ops += [f"v_add_f32_dpp v146, v146, v146 row_ror:{r} row_mask:0xf bank_mask:0xf",
                    f"v_add_f32_dpp v148, v148, v148 row_ror:{r} row_mask:0xf bank_mask:0xf"]
        ops += L("v_mov_b32 v147, v146\nv_permlane16_swap_b32 v146, v147")
        ops += ln_finish("v146", "v148", "v147", "v20")
        return [rm(x) for x in ops]
    def col_sum4():
        ops = []
        for i in range(4):
            for hi in range(2):
                f = (lambda t, r: f"v_and_b32 v{t}, s40, v{r}") if hi else (lambda t, r: f"v_lshlrev_b32 v{t}, 16, v{r}")
                c = 156 + 2 * i + hi
                ops += [f(152, 136 + i), f(153, 140 + i), f(154, 144 + i), f(155, 148 + i),
                        f"v_add_f32 v{c}, v152, v153", "v_add_f32 v154, v154, v155", f"v_add_f32 v{c}, v{c}, v154"]
        return [rm(x) for x in ops]
    def col_red():
        return [rm(x) for x in L("""v_permlane32_swap_b32 v156, v160
                    v_permlane32_swap_b32 v157, v161
                    v_permlane32_swap_b32 v158, v162
                    v_permlane32_swap_b32 v159, v163
                    v_add_f32 v156, v156, v160
                    v_add_f32 v157, v157, v161
                    v_add_f32 v158, v158, v162
                    v_add_f32 v159, v159, v163
                    v_permlane16_swap_b32 v156, v158
                    v_permlane16_swap_b32 v157, v159
                    v_add_f32 v156, v156, v158
                    v_add_f32 v157, v157, v159
                    v_add_f32_dpp v156, v156, v156 row_ror:8 row_mask:0xf bank_mask:0xf
                    v_add_f32_dpp v157, v157, v157 row_ror:8 row_mask:0xf bank_mask:0xf""")]

    NP1 = cfg.get("np1", 12)
    def wload(j):
        if cfg.get("now"): return
        if j and j % 4 == 0: a("s_add_u32 s43, s43, 4096")
        a(f"buffer_load_dwordx4 v[{WR0+4*j}:{WR0+4*j+3}], v25, s[60:63], s43 offen offset:{(j % 4)*1024}" + LDW)
    def main(dft, role):
        U = ("D" if dft else "F") + role
        vm = Cnt(a, "vmcnt", 63); lg = Cnt(a, "lgkmcnt", 15)
        stride = 1024 if dft else 3584
        wsz = 524288 if dft else 1835008
        lo0, lo1 = (8, 10) if dft else (12, 14)
        T = {}
        if dft: a("s_sub_u32 s83, s24, 14\ns_lshl_b32 s83, s83, 8")
        else: a("s_lshl_b32 s83, s24, 8")
        Q = []
        stage_tok = {}
        S0 = cfg.get("s0", 6)
        WT_S = cfg.get("wts", 0); WT_R = cfg.get("wtr", 3); PCHK = POLL_S + cfg.get("pchk", 2); PZ_S = cfg.get("pzs", 1)
        def dma_setup():
            if not dft:
                a("s_lshl_b32 s3, s23, 7\ns_lshl_b32 s31, s28, 4\ns_add_u32 s3, s3, s31\nv_add_u32 v2, s3, v26")
            else:
                a("""v_and_b32 v2, 3, v26
                     v_lshlrev_b32 v2, 5, v2
                     v_lshrrev_b32 v3, 2, v26
                     s_lshr_b32 s3, s23, 1
                     s_lshl_b32 s3, s3, 8
                     s_and_b32 s31, s23, 1
                     s_lshl_b32 s31, s31, 4
                     s_add_u32 s3, s3, s31
                     s_lshl_b32 s31, s28, 1
                     s_add_u32 s3, s3, s31
                     v_add3_u32 v2, v2, v3, s3""")
            a("v_xor_b32 v3, v27, v22\nv_lshlrev_b32 v3, 4, v3\nv_lshl_add_u32 v2, v2, 10, v3\nv_xor_b32 v3, 64, v2")
            a(f"s_lshl_b32 s31, s28, 6\ns_add_u32 s3, s83, s31\nv_mul_u32_u24 v4, {stride}, v21\nv_lshlrev_b32 v8, 4, v20\nv_add3_u32 v4, v4, v8, s3\nv_add_u32 v8, {16*stride}, v4")
            a(f"s_lshl_b32 s25, s28, 11\ns_add_u32 s30, s25, {WB}")
            if role == "A": a(f"s_mov_b32 s50, {wsz}\ns_mov_b32 s51, 0x20000")
            a(f"s_mov_b32 s6, {wsz}\ns_mov_b32 s7, 0x20000")
        cur = {"s37": None}
        def xpart(J, hf, j):
            def f():
                ro = (128 * j + 8 * hf) * 1024 if dft else (64 * hf + 8 * j) * 1024
                a(f"s_add_u32 m0, s25, {(J % 3) * 16384 + hf * 8192 + j * 1024}\ns_mov_b32 s26, {J*128 + ro}\nbuffer_load_dwordx4 v{2 + j}, s[44:47], s26 offen lds")
                for n in (2 * J, 2 * J + 1): stage_tok[n] = vm.n + 1
                vm.issue()
            return f
        def wpart(n, p, hh):
            def f():
                a(f"s_add_u32 m0, s30, {(n % 6) * WSL + p * 8192 + hh * 1024}")
                a(f"s_mov_b32 s37, {n*32*stride}" if cur["s37"] != n else "s_nop 0"); cur["s37"] = n
                a(f"buffer_load_dwordx4 v{(4, 8)[hh]}, s[{(48, 4)[p]}:{(51, 7)[p]}], s37 offen lds")
                stage_tok[n] = vm.issue()
            return f
        def ppart(j):
            def f():
                wload(j)
                if not cfg.get("now"): vm.issue()
            return f
        for n in range(16):
            hfs = ([0, 1] if n < S0 else [0]) if role == "A" else ([] if n < S0 else [1])
            if n % 2 == 0: Q += [("X", n // 2, xpart(n // 2, hf, j)) for hf in hfs for j in range(2)]
            Q += [("W", n, wpart(n, hf, hh)) for hf in hfs for hh in range(2)]
        Q += [("P", j, ppart(j)) for j in range(NP1)]
        def pump(k, passed):
            n = 0
            while n < k and Q:
                kind, i, f = Q[0]
                if kind == "W" and i > passed + 6: break
                if kind == "X" and 2 * i - 5 > passed: break
                if kind == "P" and passed < PCHK: break
                Q.pop(0); f(); n += 1
            return n
        if role == "A":
            dma_setup()
            a("s_waitcnt lgkmcnt(0)")
            a(f"s_mov_b32 s44, s4\ns_mov_b32 s45, s5\ns_mov_b32 s48, s{lo0}\ns_mov_b32 s49, s{lo0+1}\ns_mov_b32 s4, s{lo1}\ns_mov_b32 s5, s{lo1+1}")
            pump(8, -1)
            setup_frag()
            pump(cfg.get("init", 12) - 8, -1)
            srd(a, 52, 18, 19, Z_SZ if dft else H_SZ, Z_OFF if dft else H_OFF)
        else:
            a("s_lshl_b32 s76, s23, 7\ns_lshl_b32 s3, s24, 3\ns_add_u32 s76, s76, s3\ns_lshl_b32 s3, s28, 1\ns_add_u32 s76, s76, s3")
            a(f"s_lshl_b32 s77, s76, 4\ns_add_u32 s77, s77, {RT_REL}\ns_lshl_b32 s76, s76, 10")
            a(f"""s_lshr_b32 s3, s23, 2
                  s_lshl_b32 s3, s3, 7
                  s_lshl_b32 s31, s28, 5
                  s_add_u32 s3, s3, s31
                  v_add_u32 v30, s3, v26
                  v_mul_u32_u24 v30, {stride}, v30
                  s_and_b32 s3, s23, 1
                  s_lshl_b32 s3, s3, 7
                  s_add_u32 s3, s3, s83
                  v_lshlrev_b32 v31, 4, v27
                  v_add3_u32 v30, v30, v31, s3
                  s_mov_b32 s84, {8*stride}
                  s_mov_b32 s85, {16*stride}
                  s_mov_b32 s82, {24*stride}
                  s_mov_b32 s66, {wsz}
                  s_mov_b32 s67, 0x20000""")
            a("s_waitcnt lgkmcnt(0)")
            a(f"s_mov_b32 s44, s4\ns_mov_b32 s45, s5\ns_bitcmp1_b32 s23, 1\ns_cselect_b32 s64, s{lo1}, s{lo0}\ns_cselect_b32 s65, s{lo1+1}, s{lo0+1}")
            def job_loads():
                for t, so in enumerate(("0", "s84", "s85", "s82")):
                    a(rm(f"buffer_load_dwordx4 v[{136+4*t}:{139+4*t}], v30, s[64:67], {so} offen")); T["jc"] = vm.issue()
                a("buffer_load_dwordx4 v[128:131], v25, s[44:47], s76 offen"); vm.issue()
                a("buffer_load_dwordx4 v[132:135], v25, s[44:47], s76 offen offset:1024"); T["jr"] = vm.issue()
            setup_frag()
            job_loads()
            srd(a, 52, 18, 19, Z_SZ if dft else H_SZ, Z_OFF if dft else H_OFF)
            srd(a, 68, 18, 19, FT_SZ, F_OFF)
            srd(a, 48, 18, 19, ZY_SZ, Z_OFF)
            a(f"""v_mov_b32 v31, {OOB}
                  v_cmp_gt_u32 vcc, 16, v1
                  v_cndmask_b32 v9, v31, v25, vcc
                  v_lshlrev_b32 v12, 2, v20
                  v_lshl_add_u32 v12, v23, 4, v12
                  v_cmp_gt_u32 vcc, 4, v24
                  v_cndmask_b32 v12, v31, v12, vcc
                  v_cmp_eq_u32 vcc, 0x100, v0
                  v_cndmask_b32 v11, v31, 0, vcc
                  v_lshrrev_b32 v140, 1, v1
                  v_lshlrev_b32 v140, 7, v140
                  v_and_b32 v142, 1, v1
                  v_lshl_add_u32 v140, v142, 4, v140
                  s_lshl_b32 s3, s21, 5
                  s_add_u32 s3, s3, s22
                  s_lshl_b32 s3, s3, 10
                  s_add_u32 s3, s3, {HF_REL}
                  v_add_u32 v140, s3, v140
                  s_lshl_b32 s3, s2, 7
                  s_add_u32 s3, s3, {GO_REL}
                  v_mov_b32 v143, s3
                  v_cmp_eq_u32 vcc, 0x110, v0
                  v_cndmask_b32 v140, v140, v143, vcc
                  v_cmp_gt_u32 vcc, 0x111, v0
                  v_cndmask_b32 v140, v31, v140, vcc
                  v_lshlrev_b32 v142, 7, v1
                  s_lshl_b32 s78, s24, 12
                  s_add_u32 s78, s78, {CT_REL}
                  s_and_b32 s3, s23, 3
                  s_lshl_b32 s3, s3, 2
                  s_add_u32 s3, s3, s28
                  s_lshl_b32 s3, s3, 8
                  s_lshr_b32 s79, s23, 2
                  s_lshl_b32 s79, s79, 2
                  s_add_u32 s79, s79, s3
                  s_add_u32 s79, s79, s78
                  v_lshlrev_b32 v18, 5, v27
                  v_lshl_add_u32 v18, v22, 3, v18
                  s_lshl_b32 s3, s28, 8
                  s_add_u32 s3, s3, {JS}
                  v_add_u32 v18, s3, v18
                  v_and_b32 v19, 15, v1
                  v_lshlrev_b32 v19, 2, v19
                  v_lshl_add_u32 v19, v22, 8, v19
                  s_lshl_b32 s3, s28, 6
                  s_add_u32 s3, s3, {JS}
                  v_add_u32 v19, s3, v19
                  s_lshl_b32 s3, s28, 10
                  v_add_u32 v13, s3, v25
                  s_lshl_b32 s3, s28, 8
                  s_add_u32 s3, s3, {CS}
                  v_add_u32 v137, s3, v10
                  v_lshrrev_b32 v7, 1, v1
                  s_lshl_b32 s3, s28, 5
                  v_add_u32 v7, s3, v7
                  v_and_b32 v31, 1, v1
                  v_lshlrev_b32 v136, 10, v31
                  v_lshl_add_u32 v136, v7, 2, v136
                  v_add_u32 v136, {FIN}, v136
                  v_mov_b32 v138, 1
                  v_mov_b32 v141, 1
                  s_mul_i32 s38, s2, {CP}
                  s_lshl_b32 s3, s28, 11
                  s_add_u32 s38, s38, s3
                  s_add_u32 s39, s38, {Y_REL}""")
            for i in range(4): a(f"v_mov_b32 v{200+i}, -1\nv_mov_b32 v{204+i}, 0")
            if not dft:
                a("s_lshl_b32 s3, s23, 7\nv_add_u32 v7, s3, v7")
            else:
                a("""v_lshrrev_b32 v2, 3, v7
                     v_and_b32 v2, 1, v2
                     v_lshlrev_b32 v2, 2, v2
                     v_and_b32 v3, 3, v7
                     v_add_u32 v2, v2, v3
                     v_lshrrev_b32 v3, 4, v7
                     v_lshlrev_b32 v3, 1, v3
                     v_lshrrev_b32 v4, 2, v7
                     v_and_b32 v4, 1, v4
                     v_lshlrev_b32 v2, 5, v2
                     v_add3_u32 v2, v2, v3, v4
                     s_lshr_b32 s3, s23, 1
                     s_lshl_b32 s3, s3, 8
                     s_and_b32 s31, s23, 1
                     s_lshl_b32 s31, s31, 4
                     s_add_u32 s3, s3, s31
                     v_add_u32 v7, s3, v2""")
            a("v_lshlrev_b32 v7, 4, v7\nv_lshl_add_u32 v7, v31, 3, v7")
            if not dft:
                a("s_mul_i32 s32, s23, 14\ns_add_u32 s32, s32, s24\ns_lshr_b32 s33, s32, 1\ns_and_b32 s32, s32, 1\ns_lshl_b32 s32, s32, 2\ns_add_u32 s32, s32, s28")
                a("s_lshl_b32 s34, s33, 14\ns_lshl_b32 s3, s32, 7\ns_add_u32 s34, s34, s3\ns_add_u32 s36, s34, 64")
                a("v_lshlrev_b32 v28, 10, v21\nv_lshl_add_u32 v28, v20, 4, v28")
                a("s_mul_i32 s3, s32, 112\ns_add_u32 s3, s3, s33\ns_lshl_b32 s35, s3, 11")
                a(f"s_lshl_b32 s29, s28, 11\ns_add_u32 s29, s29, {SCR}\nv_lshlrev_b32 v31, 8, v23\nv_add3_u32 v29, v29, v31, s29")
                srd(a, 56, 16, 17, 1835008)
        bg = []
        pub = []
        if role == "B":
            dma_setup()
            a(f"s_mov_b32 s4, s{lo1}\ns_mov_b32 s5, s{lo1+1}")
            def col_write():
                a(rm("ds_write_b64 v18, v[156:157]")); T["cw"] = lg.issue()
            def row_store():
                a(rm("buffer_store_dword v164, v12, s[68:71], s77 offen sc1")); T["rs"] = vm.issue()
            bg = [lambda: vm.wait(T["jc"])] + col_sum4() + col_red() + [col_write, lambda: vm.wait(T["jr"])] + row_job2() + [row_store]
        def run_bg(k):
            for _ in range(k):
                if not bg: return
                x = bg.pop(0)
                if callable(x): x()
                else: a(x)
        def frag_reads(st, ksl, R):
            xo = ((st // 2) % 3) * 16384; xa = 14 + 2 * (st & 1) + ksl
            sl = st % 6; wa = 5 + sl // 3; o = (sl % 3) * WSL + ksl * 1024
            t = {}
            a(f"ds_read_b128 v[{R}:{R+3}], v{xa} offset:{xo}"); lg.issue()
            a(f"ds_read_b64_tr_b16 v[{R+8}:{R+9}], v{wa} offset:{o}"); lg.issue()
            a(f"ds_read_b64_tr_b16 v[{R+10}:{R+11}], v{wa} offset:{o + 256}"); t[0] = lg.issue()
            a(f"ds_read_b64_tr_b16 v[{R+12}:{R+13}], v{wa} offset:{o + 8192}"); lg.issue()
            a(f"ds_read_b64_tr_b16 v[{R+14}:{R+15}], v{wa} offset:{o + 8192 + 256}"); t[1] = lg.issue()
            a(f"ds_read_b128 v[{R+4}:{R+7}], v{xa} offset:{xo + 4096}")
            t[2] = t[3] = lg.issue()
            return t
        def mfma(R, i, first):
            rt, p = i >> 1, i & 1
            ac = 64 + (rt * 2 + p) * 16
            x = f"v[{R+4*rt}:{R+4*rt+3}]"; w = f"v[{R+8+4*p}:{R+11+4*p}]"
            A, B = (x, w) if dft else (w, x)
            c = "0" if first else f"v[{ac}:{ac+15}]"
            a(f"v_mfma_f32_32x32x16_bf16 v[{ac}:{ac+15}], {A}, {B}, {c}")
        X, Y = 32, 48
        if role == "A": vm.wait(stage_tok[0])
        else: run_bg(cfg.get("bgpre", 0))
        a("s_barrier")
        if stamp: a("s_memtime s[94:95]")
        xt = frag_reads(0, 0, X)
        rate = [int(c) for c in str(cfg.get("rate" + role, {"A": "r3333333333", "B": "r0000"}[role]))[1:]]
        dflt = {"A": (1, 2), "B": (2, 1)}[role]
        prate = cfg.get("prate", 2)
        def R_(hs):
            if hs > 2 * PCHK and Q and Q[0][0] == "P": return prate
            return rate[hs] if hs < len(rate) else dflt[hs & 1] + cfg.get("rplus", 0)
        flag_sent = False
        bg0, bgk = cfg.get("bg0", 12), cfg.get("bgk", 3)
        for s in range(16):
            if role == "B":
                yt = frag_reads(s, 1, Y)
                run_bg(bg0)
                if s == WT_R and not dft:
                    vm.wait(T["wt"])
                    for u in range(2):
                        a(f"ds_read_b64_tr_b16 v[{192+4*u}:{193+4*u}], v29 offset:{u*1024}"); lg.issue()
                        a(f"ds_read_b64_tr_b16 v[{194+4*u}:{195+4*u}], v29 offset:{u*1024+512}"); lg.issue()
            for i in range(4):
                lg.wait(xt[i])
                mfma(X, i, s == 0)
                if i == 0: left = R_(2 * s)
                if role == "A" and i == 0: yt = frag_reads(s, 1, Y)
                else:
                    k = (left + (3 - i)) // (4 - i)
                    left -= pump(k, s - 1) if k else 0
                    run_bg(bgk)
            if role == "B":
                if s == 15:
                    vm.wait(T["tab"])
                    a("v_add_f32 v128, v128, v129\nv_add_f32 v130, v130, v131")
                    a("ds_write2_b32 v136, v132, v133 offset1:128"); lg.issue()
                    a("v_add_f32 v128, v128, v130")
                    a("ds_write_b32 v137, v128"); lg.issue()
                if "cw" in T and "crs" not in T: T["crs"] = s
                if s == T.get("at_s", 99) + cfg.get("adelay", 3):
                    vm.wait(T["at"])
                    a(f"v_cmp_eq_u32 vcc, 0xff, v138\ns_cbranch_vccz K1_NG{U}")
                    for i in range(4):
                        a(f"s_mov_b32 s3, {GO_REL + i*8192}\nbuffer_store_dword v141, v142, s[68:71], s3 offen sc1")
                    a.label(f"K1_NG{U}")
                if s == PCHK:
                    a(f"s_cmp_lg_u32 s20, 4\ns_cbranch_scc1 K1_NP{U}\ns_mov_b32 s85, 0")
                    a.label(f"K1_PL{U}")
                    a(f"""s_waitcnt vmcnt(0)
                          v_cmp_ne_u32 vcc, 1, v139
                          s_cbranch_vccz K1_NP{U}
                          s_add_u32 s85, s85, 1
                          s_cmp_ge_u32 s85, {PMAX}
                          s_cbranch_scc1 K1_NP{U}
                          s_sleep 4
                          buffer_load_dword v139, v143, s[68:71], 0 offen sc1
                          s_branch K1_PL{U}""")
                    a.label(f"K1_NP{U}")
            vt = stage_tok.get(s + 1); ft = None
            need = ["cs", "rs", "pz"] + ([] if dft else ["ws"])
            if role == "B" and not flag_sent and all(k in T for k in need) and s >= T["pub_s"] + cfg.get("fdelay", 2):
                ft = max(T[k] for k in need); vt = max(vt or 0, ft)
            wait2(a, vm, vt, lg, lg.n)
            a("s_barrier")
            def nxt_reads():
                if s < 15: return frag_reads(s + 1, 0, X)
                epi_reads(dft, lg)
            def pubmark(k):
                T[k] = vm.issue(); T["pub_s"] = s
            if role == "B":
                if s == T.get("crs"):
                    a(rm("ds_read_b32 v152, v19")); T["cr"] = lg.issue()
                if s == PCHK:
                    a(f"s_mov_b32 s3, {RT_REL}\nbuffer_load_dwordx2 v[132:133], v7, s[68:71], s3 offen sc1"); vm.issue()
                    a("buffer_load_dwordx4 v[128:131], v13, s[68:71], s78 offen sc1"); T["tab"] = vm.issue()
                xt = nxt_reads()
                if ft is not None:
                    a("buffer_atomic_add v138, v11, s[72:75], 0 offen sc0 sc1"); T["at"] = vm.issue(); T["at_s"] = s; flag_sent = True
                    if not dft: print("arrival after barrier", s)
                if s == POLL_S:
                    a(f"s_cmp_lg_u32 s20, 4\ns_cbranch_scc1 K1_NL{U}\nbuffer_load_dword v139, v143, s[68:71], 0 offen sc1")
                    a.label(f"K1_NL{U}")
                if s == WT_S and not dft:
                    a("s_mov_b32 m0, s29\ns_nop 0\nbuffer_load_dwordx4 v28, s[56:59], s34 offen lds"); vm.issue()
                    a("s_add_u32 m0, s29, 1024\ns_nop 0\nbuffer_load_dwordx4 v28, s[56:59], s36 offen lds"); T["wt"] = vm.issue()
                if s == WT_R and not dft:
                    a("buffer_store_dwordx4 v[192:195], v25, s[60:63], s35 offen" + ST1); vm.issue()
                    a("buffer_store_dwordx4 v[196:199], v25, s[60:63], s35 offen offset:1024" + ST1); pubmark("ws")
                if s == PZ_S:
                    a(f"s_cmp_lg_u32 s2, 0\ns_cbranch_scc1 K1_NZ{U}\ns_add_u32 s3, s39, {256*CP}")
                    a("buffer_store_dwordx4 v[200:203], v25, s[48:51], s3 offen sc1\nbuffer_store_dwordx4 v[200:203], v25, s[48:51], s3 offen offset:1024 sc1")
                    a.label(f"K1_NZ{U}")
                    for so in ("s38", "s39"):
                        for o in (0, 1024):
                            a(f"buffer_store_dwordx4 v[200:203], v25, s[48:51], {so} offen offset:{o} sc1"); vm.issue()
                    a("buffer_store_dwordx4 v[204:207], v140, s[68:71], 0 offen sc1"); pubmark("pz")
                run_bg(bg0)
            for i in range(4):
                mfma(Y, i, False)
                if i == 0: left = R_(2 * s + 1)
                if not (role == "A" and i == 0):
                    k = (left + (3 - i)) // (4 - i)
                    left -= pump(k, s) if k else 0
                if role == "A":
                    if i == 0: xt = nxt_reads()
                elif s == T.get("crs") and i == 1:
                    lg.wait(T["cr"])
                    a(rm("""v_mov_b32 v153, v152
                         v_permlane32_swap_b32 v152, v153
                         v_add_f32 v152, v152, v153
                         v_mov_b32 v153, v152
                         v_permlane16_swap_b32 v152, v153
                         v_add_f32 v152, v152, v153
                         buffer_store_dword v152, v9, s[68:71], s79 offen sc1""")); pubmark("cs")
                else: run_bg(bgk)
            if role == "B" and "rs" in T and "rs_s" not in T: T["rs_s"] = s; T["pub_s"] = max(T.get("pub_s", 0), s)
        assert not Q and not bg and (role == "A" or flag_sent), (len(Q), len(bg))
        if stamp: a("s_memtime s[96:97]")

    def cs_reads(j):
        for p in range(2):
            for g in range(2):
                a(f"ds_read_b128 v[{128+p*8+g*4}:{131+p*8+g*4}], v2 offset:{p*512+(2*j+g)*32}")
    TB = (128, 32)
    def tab_reads(c):
        rt, j = c >> 1, c & 1
        for arr in range(2):
            for g in range(2):
                r = TB[c & 1] + arr * 8 + g * 4
                a(f"ds_read_b128 v[{r}:{r+3}], v3 offset:{(1+arr)*512+rt*128+(2*j+g)*32}")
    def epi_reads(dft, lg):
        if not dft:
            a(f"s_lshl_b32 s3, s28, 7\ns_add_u32 s3, s3, {CS}\nv_lshl_add_u32 v2, v23, 4, s3")
            a(f"s_lshl_b32 s3, s27, 8\ns_add_u32 s3, s3, {FIN}\nv_lshl_add_u32 v3, v24, 2, s3")
            for rt in range(2):
                a(f"ds_read_b32 v{28+rt}, v3 offset:{rt*128}"); lg.issue()
                a(f"ds_read_b32 v{30+rt}, v3 offset:{512+rt*128}"); lg.issue()
            cs_reads(0); lg.n += 4
        else:
            a(f"s_lshl_b32 s3, s28, 7\ns_add_u32 s3, s3, {CS}\nv_lshl_add_u32 v2, v24, 2, s3")
            a(f"s_lshl_b32 s3, s27, 8\ns_add_u32 s3, s3, {FIN}\nv_lshl_add_u32 v3, v23, 4, s3")
            a("ds_read_b32 v28, v2"); lg.issue()
            a("ds_read_b32 v29, v2 offset:512"); lg.issue()
            tab_reads(0); tab_reads(1); lg.n += 8

    a("s_cmp_lg_u32 s27, 0\ns_cbranch_scc1 K1_FB")
    main(False, "A")
    a.label("K1_FEPI")
    a("s_waitcnt lgkmcnt(0) ; hz:barrier\ns_nop 7\ns_nop 7")
    a(f"s_mov_b32 s41, {fbits(K0C)}\ns_mov_b32 s42, {fbits(K1C)}")
    for rt in range(2):
        r = 30 + rt; b = 32 + rt * 4
        a(f"""v_mul_f32 v{b+3}, v{r}, v{r}
              v_mul_f32 v{b}, s41, v{r}
              v_mul_f32 v{b+1}, s42, v{r}
              v_rcp_f32 v{b+2}, v{b+3}
              v_mul_f32 v{b+1}, v{b+1}, v{b+3}""")
    a("s_lshl_b32 s32, s23, 1\ns_add_u32 s32, s32, s27\ns_mul_i32 s3, s32, 112\ns_lshl_b32 s31, s24, 3\ns_add_u32 s3, s3, s31\ns_lshl_b32 s31, s28, 1\ns_add_u32 s3, s3, s31\ns_lshl_b32 s38, s3, 11")
    wl = list(range(NP1, 28)); wstep = cfg.get("wstep", 2)
    for j in range(2):
        for rt in range(2):
            m = 28 + rt; b = 32 + rt * 4
            T = 40
            ops = [[] for _ in range(9)]
            for e in range(8):
                idx = j * 8 + e
                ag = 64 + (rt * 2) * 16 + idx; au = ag + 16
                cg_ = 128 + e; cu = 136 + e
                tg, tu, z = T + e, T + 8 + e, T + 16 + e
                seq = [f"v_fma_f32 v{tg}, -v{m}, v{cg_}, v{ag}",
                       f"v_fma_f32 v{tu}, -v{m}, v{cu}, v{au}",
                       f"v_mul_f32 v{z}, v{tg}, v{tg}",
                       f"v_fma_f32 v{z}, v{z}, v{b+1}, v{b}",
                       f"v_mul_f32 v{z}, v{z}, v{tg}",
                       f"v_exp_f32 v{z}, v{z}",
                       f"v_mul_f32 v{tu}, v{tu}, v{tg}",
                       f"v_fma_f32 v{z}, v{z}, v{b+2}, v{b+2}",
                       f"v_rcp_f32 v{z}, v{z}"]
                for k_, s_ in enumerate(seq): ops[k_].append(s_)
            if j == 1 and rt == 0: a("s_waitcnt lgkmcnt(0)")
            for k_ in range(9):
                for s_ in ops[k_]: a(s_)
                if k_ == 1 and j == 0 and rt == 1: cs_reads(1)
                if wl and k_ % wstep == 0: wload(wl.pop(0))
            for e in range(8): a(f"v_mul_f32 v{T+8+e}, v{T+8+e}, v{T+16+e}")
            O = 64 + (rt * 2) * 16 + j * 8
            for q in range(4): a(f"v_cvt_pk_bf16_f32 v{O+q}, v{T+8+2*q}, v{T+9+2*q}")
            a(f"buffer_store_dwordx4 v[{O}:{O+3}], v25, s[52:55], s38 offen offset:{j*2048+rt*1024}" + STH)
    assert not wl
    a(f"""s_lshl_b32 s3, s24, 2
          s_add_u32 s3, s3, s28
          s_mul_i32 s31, s3, 37
          s_lshr_b32 s31, s31, 8
          s_mul_i32 s33, s31, 7
          s_sub_u32 s3, s3, s33
          s_lshl_b32 s3, s3, 2
          s_lshl_b32 s31, s31, 7
          s_add_u32 s3, s3, s31
          s_lshl_b32 s31, s32, 13
          s_add_u32 s3, s3, s31
          s_add_u32 s3, s3, {HF_REL}
          v_lshl_add_u32 v30, v1, 10, s3
          v_mov_b32 v31, {OOB}
          v_cmp_gt_u32 vcc, 8, v1
          v_cndmask_b32 v30, v31, v30, vcc
          s_branch K_P2""")
    a.label("K1_FB")
    a("s_nop 4 ; hz:barrier")
    main(False, "B")
    a("s_branch K1_FEPI")
    a.label("K1_DFT")
    a("s_nop 4 ; hz:barrier")
    a("s_cmp_lg_u32 s27, 0\ns_cbranch_scc1 K1_DB")
    main(True, "A")
    a("s_branch K1_DEPI")
    a.label("K1_DB")
    a("s_nop 4 ; hz:barrier")
    main(True, "B")
    a.label("K1_DEPI")
    a("s_waitcnt lgkmcnt(0) ; hz:barrier\ns_nop 7\ns_nop 7")
    lg = Cnt(a, "lgkmcnt", 15)
    a("s_cmp_eq_u32 s24, 14\ns_cselect_b32 s3, 0, 1\ns_add_u32 s3, s3, s28\nv_add_u32 v4, s3, v24\nv_cmp_eq_u32 vcc, 0, v4")
    a(f"s_mul_i32 s39, s20, {PL}\nv_mul_u32_u24 v4, 144, v24\nv_lshl_add_u32 v4, v23, 4, v4\nv_add_u32 v4, s39, v4")
    ttok = {}
    wl = list(range(NP1, 28))
    for c in range(4):
        rt, j = c >> 1, c & 1
        tb_ = TB[c & 1]
        for g in range(2):
            a(f"ds_read_b128 v[{56+4*g}:{59+4*g}], v3 offset:{3*512+rt*128+(2*j+g)*32}"); art = lg.issue()
        lg.wait(ttok.get(c))
        for p in range(2):
            ac = 64 + (rt * 2 + p) * 16 + j * 8
            for e in range(8): a(f"v_mul_f32 v{ac+e}, v{ac+e}, v{tb_+e}")
            if wl: wload(wl.pop(0))
            for e in range(8): a(f"v_fma_f32 v{ac+e}, -v{28+p}, v{tb_+8+e}, v{ac+e}")
            if wl: wload(wl.pop(0))
            if p == 1:
                if c + 2 < 4:
                    tab_reads(c + 2); lg.n += 4; ttok[c + 2] = lg.n
                lg.wait(art)
                for e in range(8): a(f"v_cndmask_b32 v{ac+e}, v{ac+e}, v{56+e}, vcc")
            O = 48 + 4 * p
            for q in range(4): a(f"v_cvt_pk_bf16_f32 v{O+q}, v{ac+2*q}, v{ac+1+2*q}")
            a(f"ds_write_b128 v4, v[{O}:{O+3}] offset:{p*32*144 + (4*rt+2*j)*16}"); lg.issue()
    while wl: wload(wl.pop(0))
    a("v_mul_u32_u24 v5, 144, v26\nv_lshl_add_u32 v5, v27, 4, v5\nv_add_u32 v5, s39, v5")
    a(f"v_mul_u32_u24 v6, {CP}, v26\nv_lshl_add_u32 v6, v27, 4, v6")
    a(f"""s_sub_u32 s3, s24, 14
         s_lshl_b32 s3, s3, 7
         s_lshl_b32 s31, s28, 5
         s_add_u32 s3, s3, s31
         s_mul_i32 s38, s3, {CP}
         s_and_b32 s3, s23, 1
         s_lshl_b32 s3, s3, 11
         s_add_u32 s38, s38, s3
         s_lshr_b32 s3, s23, 1
         s_lshl_b32 s3, s3, 8
         s_add_u32 s38, s38, s3
         s_lshl_b32 s3, s27, 7
         s_add_u32 s38, s38, s3""")
    lg.wait(lg.n)
    toks = []
    for i in range(8):
        r = 64 + 4 * i
        a(f"ds_read_b128 v[{r}:{r+3}], v5 offset:{i*1152}"); toks.append(lg.issue())
    for i in range(8):
        r = 64 + 4 * i
        lg.wait(toks[i])
        a(f"s_add_u32 s3, s38, {(i & 3) * 8 * CP + (i >> 2) * 4096}")
        a(f"buffer_store_dwordx4 v[{r}:{r+3}], v6, s[52:55], s3 offen sc1")
    a(f"v_mov_b32 v30, {OOB}")

    a.label("K_P2")
    a("s_load_dwordx2 s[56:57], s[0:1], 72 ; hz:barrier")
    vm = Cnt(a, "vmcnt", 63); lg = Cnt(a, "lgkmcnt", 15)
    if stamp == 2: a("s_memtime s[94:95]")
    srd(a, 52, 18, 19, H_SZ, H_OFF)
    srd(a, 48, 18, 19, ZY_SZ, Z_OFF)
    srd(a, 68, 18, 19, FT_SZ, F_OFF)
    a("s_lshl_b32 s23, s21, 2\ns_lshr_b32 s3, s22, 3\ns_add_u32 s23, s23, s3\ns_and_b32 s24, s22, 7")
    a("s_mul_i32 s3, s20, 14\ns_mul_i32 s25, s23, 112\ns_add_u32 s25, s25, s3\ns_lshl_b32 s25, s25, 11")
    a(f"""v_min_u32 v2, 6, v1
          s_lshl_b32 s3, s23, 3
          s_add_u32 s3, s3, s24
          s_lshl_b32 s3, s3, 3
          s_add_u32 s3, s3, s20
          s_lshl_b32 s3, s3, 7
          s_add_u32 s3, s3, {HF_REL}
          v_lshl_add_u32 v2, v2, 2, s3
          v_mov_b32 v31, 1
          s_lshl_b32 s3, s23, 6
          s_lshl_b32 s31, s20, 3
          s_add_u32 s3, s3, s31
          v_add_u32 v4, s3, v26
          v_lshlrev_b32 v3, 10, v4
          v_lshl_add_u32 v3, v27, 4, v3
          s_lshl_b32 s32, s24, 7
          v_sub_u32 v5, 2048, v4
          v_and_b32 v5, 2047, v5
          s_lshl_b32 s3, s24, 6
          v_lshl_add_u32 v6, v27, 3, s3
          v_sub_u32 v7, {512-7}, v6
          s_cmp_ge_u32 s24, 4
          s_cselect_b64 vcc, -1, 0
          s_movk_i32 s34, {CP}
          s_movk_i32 s3, {-CP}
          s_cselect_b32 s34, s3, s34
          s_mov_b32 s33, {Y_REL}
          s_mov_b32 s3, {Y_REL + 7*CP}
          s_cselect_b32 s33, s3, s33
          v_cndmask_b32 v4, v4, v5, vcc
          v_cndmask_b32 v6, v6, v7, vcc
          v_mul_u32_u24 v6, {CP}, v6
          v_lshl_add_u32 v4, v4, 2, v6
          s_mul_i32 s35, s20, {PL}
          v_mul_u32_u24 v5, 272, v24
          v_lshl_add_u32 v5, v23, 4, v5
          v_add_u32 v5, s35, v5
          s_lshl_b32 s3, s20, 3
          v_add_u32 v6, s3, v26
          v_mul_u32_u24 v6, 272, v6
          v_lshl_add_u32 v6, v27, 5, v6
          v_add_u32 v7, {4*PL}, v6
          v_add_u32 v29, s35, v25
          buffer_load_dwordx4 v[16:19], v3, s[44:47], s32 offen""")
    FLAG = "buffer_store_dword v31, v30, s[68:71], 0 offen sc1"
    a("s_cmp_eq_u32 s2, 0\ns_cselect_b32 s3, 1, s27\ns_cmp_eq_u32 s3, 0\ns_cbranch_scc1 K2_NOFFT")
    ZR, ZI, YR, YI, tmp = 64, 80, 96, 104, 112
    FR, FI, FN, TW, GC, GS = 32, 40, 112, 48, 128, 136
    PR, PI, OUT = 64, 68, 72
    a("""v_and_b32 v9, 15, v1
         s_lshl_b32 s3, s28, 4
         v_add_u32 v8, s3, v9
         v_cvt_f32_u32 v10, v8
         v_cvt_f32_u32 v11, v22
         v_cvt_f32_u32 v12, v9
         v_mul_f32 v10, 0x3c800000, v10
         v_mul_f32 v12, 0x3d000000, v12
         v_mul_f32 v14, v10, v11
         v_mul_f32 v14, 8.0, v14""".replace("8.0", "0x41000000"))
    def trig(kreg, base, mults, cdst, sdst, neg):
        for i, m in enumerate(mults): a(f"v_fmamk_f32 v{tmp+i}, v{kreg}, {fbits(float(m))}, v{base}")
        for i in range(8): a(f"v_fract_f32 v{tmp+i}, v{tmp+i}")
        for i in range(8): a(f"v_sin_f32 v{tmp+8+i}, {'-' if neg else ''}v{tmp+i}")
        for i in range(8): a(f"v_cos_f32 v{tmp+i}, v{tmp+i}")
        for i in range(4): a(f"v_cvt_pk_bf16_f32 v{sdst+i}, v{tmp+8+2*i}, v{tmp+9+2*i}")
        for i in range(4): a(f"v_cvt_pk_bf16_f32 v{cdst+i}, v{tmp+2*i}, v{tmp+1+2*i}")
    for ks in range(2): trig(10, 14, [32 * ks + j for j in range(8)], FR + 4 * ks, FI + 4 * ks, True)
    if stamp == 2: a("s_memtime s[88:89]")
    a("s_waitcnt vmcnt(0)\n" + FLAG)
    if stamp: a("s_memtime s[86:87]")
    n2s = [16 * (i >> 2) + (i & 3) for i in range(8)]
    for t2 in range(2):
        if t2: a("v_add_f32 v12, 0.5, v12")
        a("v_mul_f32 v14, v12, v11\nv_mul_f32 v14, 4.0, v14")
        trig(12, 14, n2s, GC + 4 * t2, GS + 4 * t2, True)
    a("v_mul_f32 v10, 0x3d000000, v10\nv_mul_f32 v14, v10, v11\nv_mul_f32 v14, 4.0, v14")
    for i in range(8): a(f"v_fmamk_f32 v{tmp+i}, v10, {fbits(float(n2s[i]))}, v14")
    for i in range(8): a(f"v_cos_f32 v{TW+i}, v{tmp+i}")
    for i in range(8): a(f"v_sin_f32 v{TW+8+i}, v{tmp+i}")
    a(f"""v_lshlrev_b32 v13, 8, v9
          v_lshl_add_u32 v13, v22, 4, v13
          s_lshl_b32 s3, s28, 6
          v_add_u32 v13, s3, v13
          s_mul_i32 s76, s2, {CP}
          s_add_u32 s77, s76, 4096
          s_add_u32 s29, s76, {Y_REL}
          s_cmp_eq_u32 s27, 0
          s_cselect_b32 s76, s77, s76
          s_cselect_b32 s29, {Y_REL + 256*CP}, s29
          s_add_u32 s30, s29, 4096
          s_mov_b32 s41, 0x80008000
          s_mov_b32 s36, 0""")
    if stamp == 2: a("s_memtime s[96:97]")
    if cfg.get("zlate"):
        a.label("K2_HPZ")
        a(f"""buffer_load_dword v20, v2, s[68:71], 0 offen sc1
          s_add_u32 s36, s36, 1
          s_waitcnt vmcnt(0)
          v_cmp_ne_u32 vcc, 1, v20
          s_cbranch_vccz K2_ZP
          s_sleep {cfg.get("hsleep", 2)}
          s_cmp_lt_u32 s36, {PMAX}
          s_cbranch_scc1 K2_HPZ""")
    a.label("K2_ZP")
    for f in range(4): a(f"buffer_load_dwordx4 v[{ZR+4*f}:{ZR+4*f+3}], v25, s[48:51], s76 offen offset:{f*1024} sc1")
    for f in range(4): a(f"buffer_load_dwordx4 v[{ZI+4*f}:{ZI+4*f+3}], v25, s[48:51], s77 offen offset:{f*1024} sc1")
    a("s_add_u32 s36, s36, 1\ns_waitcnt vmcnt(4)")
    a(f"v_max3_u32 v14, v{ZR}, v{ZR+1}, v{ZR+2}\nv_max3_u32 v15, v{ZR+3}, v{ZR+4}, v{ZR+5}")
    for i in range(5): a(f"v_max3_u32 v{14+(i&1)}, v{14+(i&1)}, v{ZR+6+2*i}, v{ZR+7+2*i}")
    a("s_waitcnt vmcnt(0)")
    for i in range(8): a(f"v_max3_u32 v{14+(i&1)}, v{14+(i&1)}, v{ZI+2*i}, v{ZI+1+2*i}")
    a(f"""v_max_u32 v14, v14, v15
          v_cmp_eq_u32 vcc, -1, v14
          s_cbranch_vccz K2_ZOK
          s_sleep {cfg.get("zsleep", 0)}
          s_cmp_lt_u32 s36, {PMAX}
          s_cbranch_scc1 K2_ZP""")
    a.label("K2_ZOK")
    if stamp == 1: a("s_memtime s[94:95]")
    if stamp == 2: a("s_memtime s[84:85]")
    a("s_cmp_lg_u32 s2, 0 ; hz:barrier\ns_cbranch_scc1 K2_FFT")
    for i in range(16): a(f"v_mov_b32 v{ZI+i}, 0")
    a.label("K2_FFT")
    a("s_nop 1 ; hz:barrier")
    M16 = "v_mfma_f32_16x16x32_bf16"
    q4 = lambda r: f"v[{r}:{r+3}]"
    for ks in range(2):
        for tile in range(2):
            f = tile * 2 + ks
            a(f"{M16} {q4(YR+4*tile)}, {q4(ZR+4*f)}, {q4(FR+4*ks)}, {'0' if ks == 0 else q4(YR+4*tile)}")
            a(f"{M16} {q4(YI+4*tile)}, {q4(ZR+4*f)}, {q4(FI+4*ks)}, {'0' if ks == 0 else q4(YI+4*tile)}")
            for i in range(2): a(f"v_xor_b32 v{FN+4*ks+2*tile+i}, s41, v{FI+4*ks+2*tile+i}")
    for ks in range(2):
        for tile in range(2):
            f = tile * 2 + ks
            a(f"{M16} {q4(YI+4*tile)}, {q4(ZI+4*f)}, {q4(FR+4*ks)}, {q4(YI+4*tile)}")
            a(f"{M16} {q4(YR+4*tile)}, {q4(ZI+4*f)}, {q4(FN+4*ks)}, {q4(YR+4*tile)}")
    a("buffer_load_dword v20, v2, s[68:71], 0 offen sc1")
    for i in range(8): a(f"v_mul_f32 v{tmp+i}, v{YR+i}, v{TW+i}")
    for i in range(8): a(f"v_mul_f32 v{tmp+8+i}, v{YR+i}, v{TW+8+i}")
    for i in range(8): a(f"v_fmac_f32 v{tmp+i}, v{YI+i}, v{TW+8+i}")
    for i in range(8): a(f"v_fma_f32 v{tmp+8+i}, -v{YI+i}, v{TW+i}, v{tmp+8+i}")
    for i in range(4): a(f"v_cvt_pk_bf16_f32 v{PR+i}, v{tmp+2*i}, v{tmp+1+2*i}")
    for i in range(4): a(f"v_cvt_pk_bf16_f32 v{PI+i}, v{tmp+8+2*i}, v{tmp+9+2*i}")
    for t2 in range(2): a(f"{M16} {q4(OUT+4*t2)}, {q4(PR)}, {q4(GC+4*t2)}, 0")
    for t2 in range(2): a(f"{M16} {q4(OUT+4*t2)}, {q4(PI)}, {q4(GS+4*t2)}, {q4(OUT+4*t2)}")
    a(f"buffer_store_dwordx4 {q4(OUT)}, v13, s[48:51], s29 offen sc1")
    a(f"buffer_store_dwordx4 {q4(OUT+4)}, v13, s[48:51], s30 offen sc1")
    a("s_waitcnt vmcnt(2)\nv_cmp_ne_u32 vcc, 1, v20\ns_cbranch_vccz K2_HOK\ns_branch K2_HP0")
    a.label("K2_NOFFT")
    a("s_waitcnt vmcnt(0) ; hz:barrier\n" + FLAG)
    if stamp: a("s_memtime s[86:87]")
    a.label("K2_HP0")
    a("s_mov_b32 s36, 0 ; hz:barrier")
    a.label("K2_HP")
    a(f"""buffer_load_dword v20, v2, s[68:71], 0 offen sc1
          s_add_u32 s36, s36, 1
          s_waitcnt vmcnt(0)
          v_cmp_ne_u32 vcc, 1, v20
          s_cbranch_vccz K2_HOK
          s_sleep {cfg.get("hsleep", 2)}
          s_cmp_lt_u32 s36, {PMAX}
          s_cbranch_scc1 K2_HP""")
    a.label("K2_HOK")
    a("s_mov_b32 s36, 0 ; hz:barrier")
    if stamp == 1: a("s_memtime s[88:89]")
    NL = cfg.get("nl", 8); NS = 2 if NL else 0
    free = [32, 40, 48, 56, 128, 136]
    HS, ktok, rtok = {}, {}, {}
    for j in range(2 * NL):
        a(f"s_add_u32 m0, s35, {j*1024}\ns_add_u32 s3, s25, {j*1024}\nbuffer_load_dwordx4 v25, s[52:55], s3 offen" + LDH + " lds"); ktok[j >> 1] = vm.issue()
    nxt = [NL]
    def hload():
        ks = nxt[0]; nxt[0] += 1
        r = free.pop(0); HS[ks] = r
        a(f"s_add_u32 s3, s25, {ks*2048}")
        a(f"buffer_load_dwordx4 v[{r}:{r+3}], v25, s[52:55], s3 offen" + LDH); vm.issue()
        a(f"buffer_load_dwordx4 v[{r+4}:{r+7}], v25, s[52:55], s3 offen offset:1024" + LDH); ktok[ks] = vm.issue()
    def hread(ks):
        vm.wait(ktok[ks])
        r = free.pop(0); HS[ks] = r
        a(f"ds_read_b128 {q4(r)}, v29 offset:{ks*2048}"); lg.issue()
        a(f"ds_read_b128 {q4(r+4)}, v29 offset:{ks*2048+1024}"); rtok[ks] = lg.issue()
    def yloads():
        a("s_mov_b32 s31, s33")
        for i in range(8):
            a(f"buffer_load_dword v{8+i}, v4, s[48:51], s31 offen sc1"); vm.issue()
            if i < 7: a("s_add_u32 s31, s31, s34")
    while len(free) > NS and nxt[0] < 14: hload()
    a("s_waitcnt lgkmcnt(0)\ns_mov_b32 s58, 0x200000\ns_mov_b32 s59, 0x20000")
    AC = [64 + 16 * i for i in range(4)]
    if NL: hread(0)
    for ks in range(14):
        if ks + 1 < NL: hread(ks + 1)
        if ks < NL: lg.wait(rtok[ks])
        else: vm.wait(ktok[ks])
        w = WR0 + 8 * ks; h = HS[ks]
        for et in range(2):
            for tt in range(2):
                ac = AC[et * 2 + tt]
                c = "0" if ks == 0 else f"v[{ac}:{ac+15}]"
                a(f"v_mfma_f32_32x32x16_bf16 v[{ac}:{ac+15}], {q4(w+4*et)}, {q4(h+4*tt)}, {c}")
        free += [w, h]
        while len(free) > NS and nxt[0] < 14: hload()
        if ks == cfg.get("ypos", 10): yloads()
    lg = Cnt(a, "lgkmcnt", 15)
    if stamp == 1: a("s_memtime s[84:85]")
    for ti in range(4):
        et, tt = ti >> 1, ti & 1
        for g in range(4):
            a(f"ds_write_b128 v5, {q4(AC[ti]+4*g)} offset:{tt*32*272 + et*128 + g*32}")
    a("s_waitcnt lgkmcnt(0)\ns_barrier")
    R = 64
    for p in range(8):
        for q in range(2):
            r = R + (p * 2 + q) * 4
            a(f"ds_read_b128 {q4(r)}, v{6 + (p >> 2)} offset:{(p & 3) * PL + q * 16}"); lg.issue()
    for i in range(4): a(f"v_lshlrev_b32 v{32+2*i}, 16, v{16+i}\nv_and_b32 v{33+2*i}, s40, v{16+i}")
    for p in range(0, 8, 2):
        lg.wait(2 * p + 4)
        for i in range(8): a(f"v_add_f32 v{R+8*p+i}, v{R+8*p+i}, v{R+8*p+8+i}")
        if p & 2:
            for i in range(8): a(f"v_add_f32 v{R+8*p-16+i}, v{R+8*p-16+i}, v{R+8*p+i}")
    for i in range(8): a(f"v_add_f32 v{32+i}, v{32+i}, v{R+i}")
    for i in range(8): a(f"v_add_f32 v{32+i}, v{32+i}, v{R+32+i}")
    a("s_mov_b32 s36, 0")
    a.label("K2_YP")
    a(f"""s_waitcnt vmcnt(0) ; hz:barrier
          v_max3_u32 v20, v8, v9, v10
          v_max3_u32 v21, v11, v12, v13
          v_max3_u32 v20, v20, v14, v15
          v_max_u32 v20, v20, v21
          v_cmp_eq_u32 vcc, -1, v20
          s_cbranch_vccz K2_YOK
          s_add_u32 s36, s36, 1
          s_cmp_ge_u32 s36, {PMAX}
          s_cbranch_scc1 K2_YOK""")
    yloads()
    a("s_branch K2_YP")
    a.label("K2_YOK")
    a("s_nop 0 ; hz:barrier")
    for i in range(8): a(f"v_add_f32 v{32+i}, v{32+i}, v{8+i}")
    for i in range(4): a(f"v_cvt_pk_bf16_f32 v{40+i}, v{32+2*i}, v{33+2*i}")
    a("buffer_store_dwordx4 v[40:43], v3, s[56:59], s32 offen")
    if stamp: stamp_store(a, "K_END")
    a.label("K_END")
    lines, n = hz.fix(a.l)
    return "\n".join(lines)

HEADER = open("parallel_sum__spectral_fnet__geglu_ffn__prompt.s.ref").read().split("; Override launch")[0]

def build(cfg):
    k = gen(cfg)
    out = HEADER
    out += f"; @launch grid=(256,1,1) block=(512,1,1) lds={K_LDS}\n"
    out += HDR + kern(KNAME, k)
    out += '.section .rodata,"a"\n' + kd(KNAME, 256, 102, 256)
    return out

if __name__ == "__main__":
    cfg = {}
    for kv in sys.argv[2:]:
        k, v = kv.split("=")
        cfg[k] = int(v) if v.lstrip("-").isdigit() else v
    open(sys.argv[1], "w").write(build(cfg))
```

```python
import sys, math
from asmlib import Asm, kd, kern, HDR
import hz

H_OFF, H_SZ = 0x0, 32 * 112 * 2 * 1024
WT_OFF, WT_SZ = 0x800000, 8 * 112 * 2 * 1024
Z_OFF, Z_SZ = 0xA00000, 256 * 2 * 4096
Y_OFF, Y_SZ = 0xC00000, 257 * 8192
F_OFF, F_SZ = 0xF00000, 257 * 16
RT_REL, CT_REL, FT_SZ = 0x10000, 0x20000, 0x30000
DBG_OFF = 0x1000000

class Cnt:
    def __init__(self, a, name, cap):
        self.a, self.name, self.cap = a, name, cap
        self.n = 0
        self.done = 0
    def issue(self):
        self.n += 1
        return self.n
    def need(self, tok):
        if tok is None or tok <= self.done: return None
        return self.n - tok
    def wait(self, tok):
        k = self.need(tok)
        if k is None: return
        k = min(k, self.cap)
        self.a(f"s_waitcnt {self.name}({k})")
        self.done = max(self.done, self.n - k)
    def mark(self, tok):
        if tok is not None: self.done = max(self.done, tok)

def wait2(a, vm, vt, lg, lt):
    parts = []
    k = vm.need(vt)
    if k is not None:
        k = min(k, vm.cap); parts.append(f"vmcnt({k})"); vm.done = max(vm.done, vm.n - k)
    k = lg.need(lt)
    if k is not None:
        k = min(k, lg.cap); parts.append(f"lgkmcnt({k})"); lg.done = max(lg.done, lg.n - k)
    if parts: a("s_waitcnt " + " ".join(parts))

def interleave(a, main, fill):
    n = len(main); f = len(fill); p = 0
    for i, m in enumerate(main):
        a(m)
        q = (f * (i + 1)) // n
        while p < q:
            a(fill[p]); p += 1

def srd(a, d, lo, hi, size, off=0):
    if off:
        a(f"s_add_u32 s{d}, s{lo}, {off}\ns_addc_u32 s{d+1}, s{hi}, 0")
    else:
        a(f"s_mov_b32 s{d}, s{lo}\ns_mov_b32 s{d+1}, s{hi}")
    a(f"s_mov_b32 s{d+2}, {size}\ns_mov_b32 s{d+3}, 0x20000")

def stamp_store(a, kidx, endlabel):
    a("s_memtime s[98:99]\ns_memrealtime s[100:101]\ns_waitcnt lgkmcnt(0)")
    a("s_sub_u32 s94, s94, s90\ns_sub_u32 s96, s96, s90\ns_sub_u32 s98, s98, s90\ns_sub_u32 s86, s86, s90\ns_sub_u32 s88, s88, s90")
    srd(a, 44, 18, 19, 65536, DBG_OFF)
    a("v_mov_b32 v8, s92\nv_mov_b32 v9, s100\nv_mov_b32 v10, s98\nv_mov_b32 v11, s94\nv_mov_b32 v12, s96\nv_mov_b32 v13, s86\nv_mov_b32 v14, s88\nv_mov_b32 v15, 0")
    a(f"s_lshl_b32 s3, s2, 5\ns_add_u32 s3, s3, {kidx*8192}\nv_mov_b32 v16, s3")
    a(f"s_cmp_lg_u32 s20, 0\ns_cbranch_scc1 {endlabel}\nbuffer_store_dwordx4 v[8:11], v16, s[44:47], 0 offen\nbuffer_store_dwordx4 v[12:15], v16, s[44:47], 0 offen offset:16")

WB, WSL = 49152, 16384
SCR = WB + 6 * WSL
FIN = SCR + 8192
CS = FIN + 2048
JS = CS + 1024
STW = JS + 2048
K1_LDS = STW + 64
K0C = -2.0 * math.sqrt(2.0 / math.pi) * math.log2(math.e)
K1C = K0C * 0.044715
def fbits(x):
    import struct
    return "0x%08x" % struct.unpack("<I", struct.pack("<f", x))[0]

def gen_k1(cfg):
    a = Asm()
    ST1 = {0: "", 1: " sc1", 2: " nt", 3: " sc0 sc1"}[cfg.get("st1", 1)]
    mapping = cfg.get("map1", "A"); init = cfg.get("init", 3); stamp = cfg.get("stamp", False)
    jobpos = cfg.get("jobpos", 3); bgk = cfg.get("bgk", 12)
    POLL_S = cfg.get("poll_s", 10)
    a("s_cmp_ge_u32 s2, 256\ns_cbranch_scc1 K1_END")
    a("""s_load_dwordx2 s[4:5], s[0:1], 0
         s_load_dwordx4 s[8:11], s[0:1], 24
         s_load_dwordx4 s[12:15], s[0:1], 48
         s_load_dwordx2 s[16:17], s[0:1], 64
         s_load_dwordx2 s[72:73], s[0:1], 80
         s_load_dwordx2 s[18:19], s[0:1], 88""")
    if stamp: a("s_memtime s[90:91]\ns_memrealtime s[92:93]\ns_mov_b64 s[86:87], 0\ns_mov_b64 s[88:89], 0")
    a("v_lshrrev_b32 v2, 6, v0\nv_and_b32 v1, 63, v0\ns_mov_b32 s40, 0xffff0000\nv_readfirstlane_b32 s20, v2")
    a("s_and_b32 s21, s2, 7\ns_lshr_b32 s22, s2, 3")
    if mapping == "A":
        a("s_and_b32 s23, s21, 1\ns_lshl_b32 s23, s23, 3\ns_and_b32 s3, s22, 7\ns_add_u32 s23, s23, s3")
        a("s_lshr_b32 s24, s21, 1\ns_lshl_b32 s24, s24, 2\ns_lshr_b32 s3, s22, 3\ns_add_u32 s24, s24, s3")
    else:
        a("s_lshl_b32 s23, s21, 1\ns_and_b32 s3, s22, 1\ns_add_u32 s23, s23, s3\ns_lshr_b32 s24, s22, 1")
    a("s_lshr_b32 s27, s20, 2\ns_and_b32 s28, s20, 3")
    a("""v_and_b32 v20, 3, v1
         v_lshrrev_b32 v21, 2, v1
         v_lshrrev_b32 v22, 4, v1
         v_lshrrev_b32 v26, 3, v1
         v_and_b32 v27, 7, v1
         v_lshlrev_b32 v25, 4, v1""")
    a("s_mov_b32 s46, 0x200000\ns_mov_b32 s47, 0x20000")
    a("s_cmp_ge_u32 s24, 14\ns_cbranch_scc1 K1_DFT")

    def L(txt): return [x.strip() for x in txt.split("\n") if x.strip()]

    def setup_frag():
        a("v_lshrrev_b32 v23, 5, v1\nv_and_b32 v24, 31, v1")
        a("""v_lshrrev_b32 v14, 1, v24
             v_and_b32 v14, 7, v14
             v_xor_b32 v14, v14, v23
             v_lshlrev_b32 v14, 4, v14
             v_lshlrev_b32 v15, 7, v24
             s_lshl_b32 s3, s27, 13
             v_add3_u32 v14, v14, v15, s3
             v_xor_b32 v15, 32, v14
             v_xor_b32 v16, 64, v14
             v_xor_b32 v17, 0x60, v14""")
        a(f"""v_and_b32 v29, 3, v21
              v_lshlrev_b32 v29, 6, v29
              v_and_b32 v5, 1, v22
              v_lshlrev_b32 v5, 5, v5
              v_lshlrev_b32 v6, 3, v20
              v_add3_u32 v29, v29, v5, v6
              v_lshlrev_b32 v5, 9, v23
              s_lshl_b32 s3, s28, 11
              s_add_u32 s3, s3, {WB}
              v_add3_u32 v5, v29, v5, s3
              v_add_u32 v6, {3*WSL}, v5""")

    def ln_finish(su, sq, al, sel):
        return L(f"""v_mul_f32 v164, 0x3b000000, {su}
                 v_mul_f32 v166, 0x3b000000, {sq}
                 v_fma_f32 v166, -v164, v164, v166
                 v_max_f32 v166, 0, v166
                 v_cvt_pk_bf16_f32 v167, v164, v166
                 v_lshlrev_b32 v164, 16, v167
                 v_and_b32 v166, s40, v167
                 v_add_f32 v166, 0x3727c5ac, v166
                 v_cvt_pk_bf16_f32 v166, v166, v166
                 v_and_b32 v166, s40, v166
                 v_sqrt_f32 v166, v166
                 v_cmp_eq_u32 vcc, 1, {sel}
                 v_cvt_pk_bf16_f32 v166, v166, v166
                 v_and_b32 v166, s40, v166
                 v_rcp_f32 v166, v166
                 v_cmp_eq_u32 s[80:81], 2, {sel}
                 v_mul_f32 v167, v164, v166
                 v_mul_f32 v165, {al}, v166
                 v_cndmask_b32 v164, v164, v166, vcc
                 v_cmp_eq_u32 vcc, 3, {sel}
                 v_cndmask_b32 v164, v164, v167, s[80:81]
                 v_cndmask_b32 v164, v164, v165, vcc""")
    def row_part(S, T, O):
        ops = []
        for i in range(4):
            ops += [f"v_lshlrev_b32 v{T+2*i}, 16, v{S+i}", f"v_and_b32 v{T+1+2*i}, s40, v{S+i}"]
        ops += L(f"""v_add_f32 v{O}, v{T}, v{T+2}
                    v_add_f32 v{O+1}, v{T+1}, v{T+3}
                    v_mul_f32 v{O+2}, v{T}, v{T}
                    v_mul_f32 v{T+8}, v{T+1}, v{T+1}
                    v_add_f32 v{O}, v{O}, v{T+4}
                    v_add_f32 v{O+1}, v{O+1}, v{T+5}
                    v_fmac_f32 v{O+2}, v{T+2}, v{T+2}
                    v_fmac_f32 v{T+8}, v{T+3}, v{T+3}
                    v_add_f32 v{O}, v{O}, v{T+6}
                    v_add_f32 v{O+1}, v{O+1}, v{T+7}
                    v_fmac_f32 v{O+2}, v{T+4}, v{T+4}
                    v_fmac_f32 v{T+8}, v{T+5}, v{T+5}
                    v_add_f32 v{T+9}, v{O}, v{O+1}
                    v_fmac_f32 v{O+2}, v{T+6}, v{T+6}
                    v_fmac_f32 v{T+8}, v{T+7}, v{T+7}
                    v_sub_f32 v{O+1}, v{O}, v{O+1}
                    v_mov_b32 v{O}, v{T+9}
                    v_add_f32 v{O+2}, v{O+2}, v{T+8}""")
        return ops
    def row_job2():
        ops = row_part(128, 136, 146) + row_part(132, 136, 149)
        ops += L("""v_permlane32_swap_b32 v146, v149
                    v_permlane32_swap_b32 v147, v150
                    v_permlane32_swap_b32 v148, v151
                    v_add_f32 v146, v146, v149
                    v_add_f32 v147, v147, v150
                    v_add_f32 v148, v148, v151
                    v_permlane16_swap_b32 v146, v147
                    v_mov_b32 v149, v148
                    v_add_f32 v146, v146, v147
                    v_permlane16_swap_b32 v148, v149
                    v_add_f32 v148, v148, v149""")
        for r in (8, 4, 2, 1):
            ops += [f"v_add_f32_dpp v146, v146, v146 row_ror:{r} row_mask:0xf bank_mask:0xf",
                    f"v_add_f32_dpp v148, v148, v148 row_ror:{r} row_mask:0xf bank_mask:0xf"]
        ops += L("v_mov_b32 v147, v146\nv_permlane16_swap_b32 v146, v147")
        ops += ln_finish("v146", "v148", "v147", "v20")
        return ops
    def col_sum4():
        ops = []
        for i in range(4):
            for hi in range(2):
                f = (lambda t, r: f"v_and_b32 v{t}, s40, v{r}") if hi else (lambda t, r: f"v_lshlrev_b32 v{t}, 16, v{r}")
                c = 156 + 2 * i + hi
                ops += [f(152, 136 + i), f(153, 140 + i), f(154, 144 + i), f(155, 148 + i),
                        f"v_add_f32 v{c}, v152, v153", "v_add_f32 v154, v154, v155", f"v_add_f32 v{c}, v{c}, v154"]
        return ops
    def col_red():
        return L("""v_permlane32_swap_b32 v156, v160
                    v_permlane32_swap_b32 v157, v161
                    v_permlane32_swap_b32 v158, v162
                    v_permlane32_swap_b32 v159, v163
                    v_add_f32 v156, v156, v160
                    v_add_f32 v157, v157, v161
                    v_add_f32 v158, v158, v162
                    v_add_f32 v159, v159, v163
                    v_permlane16_swap_b32 v156, v158
                    v_permlane16_swap_b32 v157, v159
                    v_add_f32 v156, v156, v158
                    v_add_f32 v157, v157, v159
                    v_add_f32_dpp v156, v156, v156 row_ror:8 row_mask:0xf bank_mask:0xf
                    v_add_f32_dpp v157, v157, v157 row_ror:8 row_mask:0xf bank_mask:0xf""")

    def main(dft, role):
        U = ("D" if dft else "F") + role
        vm = Cnt(a, "vmcnt", 63); lg = Cnt(a, "lgkmcnt", 15)
        stride = 1024 if dft else 3584
        wsz = 524288 if dft else 1835008
        lo0, lo1 = (8, 10) if dft else (12, 14)
        T = {}
        tl = cfg.get("tl")
        if dft: a("s_sub_u32 s83, s24, 14\ns_lshl_b32 s83, s83, 8")
        else: a("s_lshl_b32 s83, s24, 8")
        Q = []
        stage_tok = {}
        S0 = cfg.get("s0", 6)
        def dma_setup():
            if not dft:
                a("s_lshl_b32 s3, s23, 7\ns_lshl_b32 s31, s28, 4\ns_add_u32 s3, s3, s31\nv_add_u32 v2, s3, v26")
            else:
                a("""v_and_b32 v2, 3, v26
                     v_lshlrev_b32 v2, 5, v2
                     v_lshrrev_b32 v3, 2, v26
                     s_lshr_b32 s3, s23, 1
                     s_lshl_b32 s3, s3, 8
                     s_and_b32 s31, s23, 1
                     s_lshl_b32 s31, s31, 4
                     s_add_u32 s3, s3, s31
                     s_lshl_b32 s31, s28, 1
                     s_add_u32 s3, s3, s31
                     v_add3_u32 v2, v2, v3, s3""")
            a("v_xor_b32 v3, v27, v22\nv_lshlrev_b32 v3, 4, v3\nv_lshl_add_u32 v2, v2, 10, v3\nv_xor_b32 v3, 64, v2")
            a(f"s_lshl_b32 s31, s28, 6\ns_add_u32 s3, s83, s31\nv_mul_u32_u24 v4, {stride}, v21\nv_lshlrev_b32 v8, 4, v20\nv_add3_u32 v4, v4, v8, s3\nv_add_u32 v8, {16*stride}, v4")
            a(f"s_lshl_b32 s25, s28, 11\ns_add_u32 s30, s25, {WB}")
            a(f"s_mov_b32 s50, {wsz}\ns_mov_b32 s51, 0x20000\ns_mov_b32 s6, {wsz}\ns_mov_b32 s7, 0x20000")
        cur = {"s37": None}
        def xpart(J, hf, j):
            def f():
                ro = (128 * j + 8 * hf) * 1024 if dft else (64 * hf + 8 * j) * 1024
                a(f"s_add_u32 m0, s25, {(J % 3) * 16384 + hf * 8192 + j * 1024}\ns_mov_b32 s26, {J*128 + ro}\nbuffer_load_dwordx4 v{2 + j}, s[44:47], s26 offen lds")
                for n in (2 * J, 2 * J + 1): stage_tok[n] = vm.n + 1
                vm.issue()
            return f
        def wpart(n, p, hh):
            def f():
                a(f"s_add_u32 m0, s30, {(n % 6) * WSL + p * 8192 + hh * 1024}")
                a(f"s_mov_b32 s37, {n*32*stride}" if cur["s37"] != n else "s_nop 0"); cur["s37"] = n
                a(f"buffer_load_dwordx4 v{(4, 8)[hh]}, s[{(48, 4)[p]}:{(51, 7)[p]}], s37 offen lds")
                stage_tok[n] = vm.issue()
            return f
        for n in range(16):
            hfs = ([0, 1] if n < S0 else [0]) if role == "A" else ([] if n < S0 else [1])
            if n % 2 == 0: Q += [("X", n // 2, xpart(n // 2, hf, j)) for hf in hfs for j in range(2)]
            Q += [("W", n, wpart(n, hf, hh)) for hf in hfs for hh in range(2)]
        def pump(k, passed):
            n = 0
            while n < k and Q:
                kind, i, f = Q[0]
                if kind == "W" and i > passed + 6: break
                if kind == "X" and 2 * i - 5 > passed: break
                Q.pop(0); f(); n += 1
            return n
        if role == "A":
            dma_setup()
            a("s_waitcnt lgkmcnt(0)")
            if stamp: a("s_memtime s[86:87]")
            a(f"s_mov_b32 s44, s4\ns_mov_b32 s45, s5\ns_mov_b32 s48, s{lo0}\ns_mov_b32 s49, s{lo0+1}\ns_mov_b32 s4, s{lo1}\ns_mov_b32 s5, s{lo1+1}")
            pump(8, -1)
            setup_frag()
            pump(cfg.get("init", 12) - 8, -1)
            if stamp and not tl: a("s_memtime s[88:89]")
            srd(a, 52, 18, 19, Z_SZ if dft else H_SZ, Z_OFF if dft else H_OFF)
        else:
            a("s_lshl_b32 s76, s23, 7\ns_lshl_b32 s3, s24, 3\ns_add_u32 s76, s76, s3\ns_lshl_b32 s3, s28, 1\ns_add_u32 s76, s76, s3")
            a(f"s_lshl_b32 s77, s76, 4\ns_add_u32 s77, s77, {RT_REL}\ns_lshl_b32 s76, s76, 10")
            a(f"""s_lshr_b32 s3, s23, 2
                  s_lshl_b32 s3, s3, 7
                  s_lshl_b32 s31, s28, 5
                  s_add_u32 s3, s3, s31
                  v_add_u32 v30, s3, v26
                  v_mul_u32_u24 v30, {stride}, v30
                  s_and_b32 s3, s23, 1
                  s_lshl_b32 s3, s3, 7
                  s_add_u32 s3, s3, s83
                  v_lshlrev_b32 v31, 4, v27
                  v_add3_u32 v30, v30, v31, s3
                  s_mov_b32 s84, {8*stride}
                  s_mov_b32 s85, {16*stride}
                  s_mov_b32 s82, {24*stride}
                  s_mov_b32 s66, {wsz}
                  s_mov_b32 s67, 0x20000""")
            a("s_waitcnt lgkmcnt(0)")
            a(f"s_mov_b32 s44, s4\ns_mov_b32 s45, s5\ns_bitcmp1_b32 s23, 1\ns_cselect_b32 s64, s{lo1}, s{lo0}\ns_cselect_b32 s65, s{lo1+1}, s{lo0+1}")
            def job_loads():
                for t, so in enumerate(("0", "s84", "s85", "s82")):
                    a(f"buffer_load_dwordx4 v[{136+4*t}:{139+4*t}], v30, s[64:67], {so} offen"); T["jc"] = vm.issue()
                a("buffer_load_dwordx4 v[128:131], v25, s[44:47], s76 offen"); vm.issue()
                a("buffer_load_dwordx4 v[132:135], v25, s[44:47], s76 offen offset:1024"); T["jr"] = vm.issue()
            if cfg.get("jobearly", 0): job_loads()
            setup_frag()
            if not cfg.get("jobearly", 0): job_loads()
            srd(a, 52, 18, 19, Z_SZ if dft else H_SZ, Z_OFF if dft else H_OFF)
            srd(a, 68, 18, 19, FT_SZ, F_OFF)
            a("s_mov_b32 s74, 256\ns_mov_b32 s75, 0x20000")
            a(f"""v_mov_b32 v31, 0x1000000
                  v_lshlrev_b32 v10, 2, v1
                  v_cmp_gt_u32 vcc, 16, v1
                  v_cndmask_b32 v9, v31, v25, vcc
                  v_lshlrev_b32 v12, 2, v20
                  v_lshl_add_u32 v12, v23, 4, v12
                  v_cmp_gt_u32 vcc, 4, v24
                  v_cndmask_b32 v12, v31, v12, vcc
                  v_cmp_eq_u32 vcc, 0x100, v0
                  s_and_b32 s3, s2, 63
                  s_lshl_b32 s3, s3, 2
                  v_mov_b32 v11, s3
                  v_cndmask_b32 v11, v31, v11, vcc
                  s_lshl_b32 s78, s24, 12
                  s_add_u32 s78, s78, {CT_REL}
                  s_and_b32 s3, s23, 3
                  s_lshl_b32 s3, s3, 2
                  s_add_u32 s3, s3, s28
                  s_lshl_b32 s3, s3, 8
                  s_lshr_b32 s79, s23, 2
                  s_lshl_b32 s79, s79, 2
                  s_add_u32 s79, s79, s3
                  s_add_u32 s79, s79, s78
                  v_lshlrev_b32 v18, 5, v27
                  v_lshl_add_u32 v18, v22, 3, v18
                  s_lshl_b32 s3, s28, 8
                  v_add_u32 v170, s3, v18
                  s_add_u32 s3, s3, {JS}
                  v_add_u32 v18, s3, v18
                  v_add_u32 v170, {CS}, v170
                  v_and_b32 v19, 15, v1
                  v_lshlrev_b32 v19, 2, v19
                  v_lshl_add_u32 v19, v22, 8, v19
                  s_lshl_b32 s3, s28, 6
                  s_add_u32 s3, s3, {JS}
                  v_add_u32 v19, s3, v19
                  s_lshl_b32 s3, s28, 10
                  v_add_u32 v13, s3, v25
                  s_lshl_b32 s3, s28, 8
                  s_add_u32 s3, s3, {CS}
                  v_add_u32 v169, s3, v10
                  v_lshrrev_b32 v7, 1, v1
                  s_lshl_b32 s3, s28, 5
                  v_add_u32 v7, s3, v7
                  v_and_b32 v31, 1, v1
                  v_lshlrev_b32 v168, 10, v31
                  v_lshl_add_u32 v168, v7, 2, v168
                  v_add_u32 v168, {FIN}, v168
                  v_mov_b32 v179, {STW}
                  v_mov_b32 v176, 1""")
            if not dft:
                a("s_lshl_b32 s3, s23, 7\nv_add_u32 v7, s3, v7")
            else:
                a("""v_lshrrev_b32 v2, 3, v7
                     v_and_b32 v2, 1, v2
                     v_lshlrev_b32 v2, 2, v2
                     v_and_b32 v3, 3, v7
                     v_add_u32 v2, v2, v3
                     v_lshrrev_b32 v3, 4, v7
                     v_lshlrev_b32 v3, 1, v3
                     v_lshrrev_b32 v4, 2, v7
                     v_and_b32 v4, 1, v4
                     v_lshlrev_b32 v2, 5, v2
                     v_add3_u32 v2, v2, v3, v4
                     s_lshr_b32 s3, s23, 1
                     s_lshl_b32 s3, s3, 8
                     s_and_b32 s31, s23, 1
                     s_lshl_b32 s31, s31, 4
                     s_add_u32 s3, s3, s31
                     v_add_u32 v7, s3, v2""")
            a("v_lshlrev_b32 v7, 4, v7\nv_lshl_add_u32 v7, v31, 3, v7")
            if not dft:
                a("s_mul_i32 s32, s23, 14\ns_add_u32 s32, s32, s24\ns_lshr_b32 s33, s32, 1\ns_and_b32 s32, s32, 1\ns_lshl_b32 s32, s32, 2\ns_add_u32 s32, s32, s28")
                a("s_lshl_b32 s34, s33, 14\ns_lshl_b32 s3, s32, 7\ns_add_u32 s34, s34, s3\ns_add_u32 s36, s34, 64")
                a("v_lshlrev_b32 v28, 10, v21\nv_lshl_add_u32 v28, v20, 4, v28")
                a("s_mul_i32 s3, s32, 112\ns_add_u32 s3, s3, s33\ns_lshl_b32 s35, s3, 11")
                a(f"s_lshl_b32 s29, s28, 11\ns_add_u32 s29, s29, {SCR}\nv_lshlrev_b32 v31, 8, v23\nv_add3_u32 v29, v29, v31, s29")
                srd(a, 56, 16, 17, 1835008)
                srd(a, 60, 18, 19, WT_SZ, WT_OFF)
        bg = []
        if role == "B":
            dma_setup()
            a(f"s_mov_b32 s4, s{lo1}\ns_mov_b32 s5, s{lo1+1}")
            def col_write():
                a("ds_write_b64 v18, v[156:157]"); T["cw"] = lg.issue()
            def row_store():
                a("buffer_store_dword v164, v12, s[68:71], s77 offen sc1"); T["rs"] = vm.issue()
            bg = [lambda: vm.wait(T["jc"])] + col_sum4() + col_red() + [col_write, lambda: vm.wait(T["jr"])] + row_job2() + [row_store]
        def run_bg(k):
            for _ in range(k):
                if not bg: return
                x = bg.pop(0)
                if callable(x): x()
                else: a(x)
        def frag_reads(st, ksl, R):
            xo = ((st // 2) % 3) * 16384; xa = 14 + 2 * (st & 1) + ksl
            sl = st % 6; wa = 5 + sl // 3; o = (sl % 3) * WSL + ksl * 1024
            t = {}
            a(f"ds_read_b128 v[{R}:{R+3}], v{xa} offset:{xo}"); lg.issue()
            a(f"ds_read_b64_tr_b16 v[{R+8}:{R+9}], v{wa} offset:{o}"); lg.issue()
            a(f"ds_read_b64_tr_b16 v[{R+10}:{R+11}], v{wa} offset:{o + 256}"); t[0] = lg.issue()
            a(f"ds_read_b64_tr_b16 v[{R+12}:{R+13}], v{wa} offset:{o + 8192}"); lg.issue()
            a(f"ds_read_b64_tr_b16 v[{R+14}:{R+15}], v{wa} offset:{o + 8192 + 256}"); t[1] = lg.issue()
            a(f"ds_read_b128 v[{R+4}:{R+7}], v{xa} offset:{xo + 4096}")
            t[2] = t[3] = lg.issue()
            return t
        def mfma(R, i, first):
            rt, p = i >> 1, i & 1
            ac = 64 + (rt * 2 + p) * 16
            x = f"v[{R+4*rt}:{R+4*rt+3}]"; w = f"v[{R+8+4*p}:{R+11+4*p}]"
            A, B = (x, w) if dft else (w, x)
            c = "0" if first else f"v[{ac}:{ac+15}]"
            a(f"v_mfma_f32_32x32x16_bf16 v[{ac}:{ac+15}], {A}, {B}, {c}")
        X, Y = 32, 48
        WT_S = cfg.get("wts", 4); WT_R = cfg.get("wtr", 8); PCHK = POLL_S + cfg.get("pchk", 2)
        if role == "A": vm.wait(stage_tok[0])
        else: run_bg(cfg.get("bgpre", 0))
        a("s_barrier")
        if stamp: a("s_memtime s[94:95]")
        if tl: a("s_memtime s[88:89]")
        xt = frag_reads(0, 0, X)
        rate = [int(c) for c in str(cfg.get("rate" + role, {"A": "r3333333333", "B": "r0000"}[role]))[1:]]
        dflt = {"A": (1, 2), "B": (2, 1)}[role]
        R_ = lambda hs: rate[hs] if hs < len(rate) else dflt[hs & 1] + cfg.get("rplus", 0)
        flag_sent = False
        exp = 5 if cfg.get("force_fb") else 4
        bg0, bgk = cfg.get("bg0", 12), cfg.get("bgk", 3)
        for s in range(16):
            if role == "B":
                yt = frag_reads(s, 1, Y)
                run_bg(bg0)
                if s == WT_R and not dft:
                    vm.wait(T["wt"])
                    for u in range(2):
                        a(f"ds_read_b64_tr_b16 v[{128+4*u}:{129+4*u}], v29 offset:{u*1024}"); lg.issue()
                        a(f"ds_read_b64_tr_b16 v[{130+4*u}:{131+4*u}], v29 offset:{u*1024+512}"); lg.issue()
            for i in range(4):
                lg.wait(xt[i])
                mfma(X, i, s == 0)
                if i == 0: left = R_(2 * s)
                if role == "A" and i == 0: yt = frag_reads(s, 1, Y)
                else:
                    k = (left + (3 - i)) // (4 - i) if role == "A" else (left + (3 - i)) // (4 - i)
                    left -= pump(k, s - 1) if k else 0
                    run_bg(bgk)
            if role == "B":
                if s == 15:
                    a(f"v_cmp_ne_u32 vcc, 0, v177\ns_cbranch_vccnz K1_SLOW{U}")
                    vm.wait(T["tab"])
                    a("v_add_f32 v128, v128, v129\nv_add_f32 v130, v130, v131")
                    a("ds_write2_b32 v168, v164, v165 offset1:128"); lg.issue()
                    a("v_add_f32 v128, v128, v130")
                    a("ds_write_b32 v169, v128"); lg.issue()
                    a.label(f"K1_BACK{U}")
                if "cw" in T and "crs" not in T: T["crs"] = s
                if s == PCHK:
                    a(f"s_cmp_lg_u32 s20, 4\ns_cbranch_scc1 K1_NP{U}\ns_mov_b32 s85, 0")
                    a.label(f"K1_PL{U}")
                    a(f"""s_waitcnt vmcnt(0)
                          v_cmp_ne_u32 vcc, {exp}, v177
                          v_mov_b32 v180, 0
                          s_cbranch_vccz K1_PW{U}
                          v_mov_b32 v180, 1
                          s_add_u32 s85, s85, 1
                          s_cmp_ge_u32 s85, {cfg.get("fbmax", 200)}
                          s_cbranch_scc1 K1_PW{U}
                          s_sleep 8
                          buffer_load_dword v177, v10, s[72:75], 0 offen sc1
                          s_branch K1_PL{U}""")
                    a.label(f"K1_PW{U}")
                    a("ds_write_b32 v179, v180\ns_waitcnt lgkmcnt(0)")
                    a.label(f"K1_NP{U}")
            vt = stage_tok.get(s + 1); ft = None
            if role == "B" and not flag_sent and "cs" in T and "rs" in T and s >= T["cs_s"] + cfg.get("fdelay", 2):
                ft = max(T["cs"], T["rs"]); vt = max(vt or 0, ft)
            if tl: a("s_memtime s[98:99]"); lg.issue()
            wait2(a, vm, vt, lg, lg.n)
            if tl: a(f"s_sub_u32 s98, s98, s90\nv_writelane_b32 v240, s98, {32+s}\ns_memtime s[98:99]\ns_waitcnt lgkmcnt(0)\ns_sub_u32 s98, s98, s90\nv_writelane_b32 v242, s98, {s}")
            if tl: a(f"s_sub_u32 s88, s88, s90\nv_writelane_b32 v240, s88, {s}")
            a("s_barrier")
            if tl: a("s_memtime s[88:89]")
            def nxt_reads():
                if s < 15: return frag_reads(s + 1, 0, X)
                epi_reads(dft, lg)
            if role == "B":
                if s == T.get("crs"):
                    a("ds_read_b32 v152, v19"); T["cr"] = lg.issue()
                if s == PCHK:
                    a("ds_read_b32 v177, v179"); lg.issue()
                    a(f"s_mov_b32 s3, {RT_REL}\nbuffer_load_dwordx2 v[164:165], v7, s[68:71], s3 offen sc1"); vm.issue()
                    a("buffer_load_dwordx4 v[128:131], v13, s[68:71], s78 offen sc1"); T["tab"] = vm.issue()
                xt = nxt_reads()
                if ft is not None:
                    a("buffer_atomic_add v176, v11, s[72:75], 0 offen sc1"); vm.issue(); flag_sent = True
                    if not dft: print("flag after barrier", s)
                if s == POLL_S:
                    a(f"s_cmp_lg_u32 s20, 4\ns_cbranch_scc1 K1_NL{U}\nbuffer_load_dword v177, v10, s[72:75], 0 offen sc1")
                    a.label(f"K1_NL{U}")
                if s == WT_S and not dft:
                    a("s_mov_b32 m0, s29\ns_nop 0\nbuffer_load_dwordx4 v28, s[56:59], s34 offen lds"); vm.issue()
                    a("s_add_u32 m0, s29, 1024\ns_nop 0\nbuffer_load_dwordx4 v28, s[56:59], s36 offen lds"); T["wt"] = vm.issue()
                if s == WT_R and not dft:
                    a("buffer_store_dwordx4 v[128:131], v25, s[60:63], s35 offen" + ST1); vm.issue()
                    a("buffer_store_dwordx4 v[132:135], v25, s[60:63], s35 offen offset:1024" + ST1); vm.issue()
                run_bg(bg0)
            for i in range(4):
                mfma(Y, i, False)
                if i == 0: left = R_(2 * s + 1)
                if not (role == "A" and i == 0):
                    k = (left + (3 - i)) // (4 - i)
                    left -= pump(k, s) if k else 0
                if role == "A":
                    if i == 0: xt = nxt_reads()
                elif s == T.get("crs") and i == 1:
                    lg.wait(T["cr"])
                    a("""v_mov_b32 v153, v152
                         v_permlane32_swap_b32 v152, v153
                         v_add_f32 v152, v152, v153
                         v_mov_b32 v153, v152
                         v_permlane16_swap_b32 v152, v153
                         v_add_f32 v152, v152, v153
                         buffer_store_dword v152, v9, s[68:71], s79 offen sc1"""); T["cs"] = vm.issue(); T["cs_s"] = s
                else: run_bg(bgk)
            if role == "B" and "rs" in T and "rs_s" not in T: T["rs_s"] = s; T["cs_s"] = max(T.get("cs_s", 0), s)
        assert not Q and not bg and (role == "A" or flag_sent)
        if stamp: a("s_memtime s[96:97]")
        if tl:
            a("s_waitcnt lgkmcnt(0)\ns_sub_u32 s88, s88, s90\nv_writelane_b32 v240, s88, 16\ns_sub_u32 s88, s96, s90\nv_writelane_b32 v240, s88, 17")
            srd(a, 80, 18, 19, 0x100000, DBG_OFF + 0x10000)
            a("s_lshl_b32 s3, s2, 3\ns_add_u32 s3, s3, s20\ns_lshl_b32 s3, s3, 9\nv_lshlrev_b32 v241, 2, v1\nbuffer_store_dword v240, v241, s[80:83], s3 offen\nbuffer_store_dword v242, v241, s[80:83], s3 offen offset:256")
        def slow():
            a.label(f"K1_SLOW{U}")
            a("s_waitcnt vmcnt(0) ; hz:barrier")
            a(f"""v_lshlrev_b32 v168, 9, v20
                  v_lshl_add_u32 v168, v23, 2, v168
                  s_lshl_b32 s3, s28, 7
                  s_add_u32 s3, s3, {FIN}
                  v_add_u32 v168, s3, v168
                  s_mov_b32 s84, 0""")
            a.label(f"K1_SLOW{U}_R")
            a("""s_add_u32 s85, s84, 2 ; hz:barrier
                 v_readlane_b32 s76, v7, s84
                 v_readlane_b32 s77, v7, s85
                 s_lshl_b32 s76, s76, 6
                 s_lshl_b32 s77, s77, 6
                 buffer_load_dwordx4 v[128:131], v25, s[44:47], s76 offen
                 buffer_load_dwordx4 v[132:135], v25, s[44:47], s77 offen
                 s_waitcnt vmcnt(0)""")
            for x in row_job2(): a(x)
            a(f"ds_write_b32 v168, v164\nv_add_u32 v168, 8, v168\ns_add_u32 s84, s84, 4\ns_cmp_lt_u32 s84, 64\ns_cbranch_scc1 K1_SLOW{U}_R")
            a(f"""s_bitcmp1_b32 s28, 1
                  s_cselect_b32 s64, s{lo1}, s{lo0}
                  s_cselect_b32 s65, s{lo1+1}, s{lo0+1}
                  v_mul_u32_u24 v30, {stride}, v26
                  s_and_b32 s3, s28, 1
                  s_lshl_b32 s3, s3, 7
                  s_add_u32 s3, s3, s83
                  v_lshlrev_b32 v31, 4, v27
                  v_add3_u32 v30, v30, v31, s3
                  s_mov_b32 s76, 0""")
            for i in range(8): a(f"v_mov_b32 v{176+i}, 0")
            a.label(f"K1_SLOW{U}_C")
            a("s_nop 0 ; hz:barrier")
            for t in range(4):
                a(f"buffer_load_dwordx4 v[{136+4*t}:{139+4*t}], v30, s[64:67], s76 offen\ns_add_u32 s76, s76, {8*stride}")
            a("s_waitcnt vmcnt(0)")
            for x in col_sum4(): a(x)
            for i in range(8): a(f"v_add_f32 v{176+i}, v{176+i}, v{156+i}")
            a(f"s_cmp_lt_u32 s76, {512*stride}\ns_cbranch_scc1 K1_SLOW{U}_C")
            for i in range(8): a(f"v_mov_b32 v{156+i}, v{176+i}")
            for x in col_red(): a(x)
            a(f"ds_write_b64 v170, v[156:157]\ns_branch K1_BACK{U}")
        return slow

    def epi_reads(dft, lg):
        if not dft:
            a(f"s_lshl_b32 s3, s28, 7\ns_add_u32 s3, s3, {CS}\nv_lshl_add_u32 v164, v23, 4, s3")
            a(f"s_lshl_b32 s3, s27, 8\ns_add_u32 s3, s3, {FIN}\nv_lshl_add_u32 v165, v24, 2, s3")
            for rt in range(2):
                a(f"ds_read_b32 v{160+rt}, v165 offset:{rt*128}"); lg.issue()
                a(f"ds_read_b32 v{162+rt}, v165 offset:{512+rt*128}"); lg.issue()
            for p in range(2):
                for g in range(4):
                    r = 128 + (p * 4 + g) * 4
                    a(f"ds_read_b128 v[{r}:{r+3}], v164 offset:{p*512+g*32}"); lg.issue()
        else:
            a(f"s_lshl_b32 s3, s28, 7\ns_add_u32 s3, s3, {CS}\nv_lshl_add_u32 v164, v24, 2, s3")
            a(f"s_lshl_b32 s3, s27, 8\ns_add_u32 s3, s3, {FIN}\nv_lshl_add_u32 v165, v23, 4, s3")
            a("ds_read_b32 v160, v164"); lg.issue()
            a("ds_read_b32 v161, v164 offset:512"); lg.issue()
            for arr, base in ((1, 128), (2, 176), (3, 208)):
                for rt in range(2):
                    for g in range(4):
                        r = base + (rt * 4 + g) * 4
                        a(f"ds_read_b128 v[{r}:{r+3}], v165 offset:{arr*512+rt*128+g*32}"); lg.issue()
                        if lg.n - lg.done > 14: lg.wait(lg.n - 6)

    def stamps_out():
        if not stamp: return
        stamp_store(a, 0, "K1_END")

    a("s_cmp_lg_u32 s27, 0\ns_cbranch_scc1 K1_FB")
    main(False, "A")
    a.label("K1_FEPI")
    a("s_waitcnt lgkmcnt(0) ; hz:barrier\ns_setprio 0\ns_nop 7\ns_nop 7")
    a(f"s_mov_b32 s41, {fbits(K0C)}\ns_mov_b32 s42, {fbits(K1C)}")
    for rt in range(2):
        r = 162 + rt; b = 32 + rt * 4
        a(f"""v_mul_f32 v{b+3}, v{r}, v{r}
              v_mul_f32 v{b}, s41, v{r}
              v_mul_f32 v{b+1}, s42, v{r}
              v_rcp_f32 v{b+2}, v{b+3}
              v_mul_f32 v{b+1}, v{b+1}, v{b+3}""")
    a("s_lshl_b32 s3, s23, 1\ns_add_u32 s3, s3, s27\ns_mul_i32 s3, s3, 112\ns_lshl_b32 s31, s24, 3\ns_add_u32 s3, s3, s31\ns_lshl_b32 s31, s28, 1\ns_add_u32 s3, s3, s31\ns_lshl_b32 s38, s3, 11")
    d2 = lambda r: f"v[{r}:{r+1}]"
    for rt in range(2):
        m = 160 + rt; b = 32 + rt * 4
        for j in range(2):
            T = 40 + 0
            ops = [[] for _ in range(9)]
            for e in range(0, 8, 2):
                idx = j * 8 + e
                ag = 64 + (rt * 2) * 16 + idx; au = ag + 16
                cg_ = 128 + idx; cu = 144 + idx
                tg, tu, z = T + e, T + 8 + e, T + 16 + e
                mo = f"op_sel:[{rt},0,0] op_sel_hi:[{rt},1,1] neg_lo:[1,0,0] neg_hi:[1,0,0]"
                seq = [[f"v_pk_fma_f32 {d2(tg)}, v[160:161], {d2(cg_)}, {d2(ag)} {mo}"],
                       [f"v_pk_fma_f32 {d2(tu)}, v[160:161], {d2(cu)}, {d2(au)} {mo}"],
                       [f"v_pk_mul_f32 {d2(z)}, {d2(tg)}, {d2(tg)}"],
                       [f"v_pk_fma_f32 {d2(z)}, {d2(z)}, {d2(b)}, {d2(b)} op_sel:[0,1,0] op_sel_hi:[1,1,0]"],
                       [f"v_pk_mul_f32 {d2(z)}, {d2(z)}, {d2(tg)}"],
                       [f"v_exp_f32 v{z}, v{z}", f"v_exp_f32 v{z+1}, v{z+1}"],
                       [f"v_pk_mul_f32 {d2(tu)}, {d2(tu)}, {d2(tg)}"],
                       [f"v_pk_fma_f32 {d2(z)}, {d2(z)}, {d2(b+2)}, {d2(b+2)} op_sel:[0,0,0] op_sel_hi:[1,0,0]"],
                       [f"v_rcp_f32 v{z}, v{z}", f"v_rcp_f32 v{z+1}, v{z+1}"]]
                for k_, s_ in enumerate(seq): ops[k_] += s_
            for k_ in range(9):
                for s_ in ops[k_]: a(s_)
            for e in range(0, 8, 2): a(f"v_pk_mul_f32 {d2(T+8+e)}, {d2(T+8+e)}, {d2(T+16+e)}")
            O = 164 + 4 * ((rt * 2 + j) & 1)
            for q in range(4): a(f"v_cvt_pk_bf16_f32 v{O+q}, v{T+8+2*q}, v{T+9+2*q}")
            a(f"buffer_store_dwordx4 v[{O}:{O+3}], v25, s[52:55], s38 offen offset:{j*2048+rt*1024}" + ST1)
    a("s_cmp_lg_u32 s2, 0\ns_cbranch_scc1 K1_FFN_DONE")
    srd(a, 44, 18, 19, F_SZ, F_OFF)
    a("v_mov_b32 v8, 0\nv_mov_b32 v9, 0\nv_mov_b32 v10, 0\nv_mov_b32 v11, 0\nv_lshlrev_b32 v12, 4, v0")
    a("buffer_store_dwordx4 v[8:11], v12, s[44:47], 0 offen")
    a.label("K1_FFN_DONE")
    stamps_out()
    a("s_endpgm")
    a.label("K1_FB")
    a("s_nop 4 ; hz:barrier")
    slowF = main(False, "B")
    a("s_branch K1_FEPI")
    slowF()
    a.label("K1_DFT")
    a("s_nop 4 ; hz:barrier")
    a("s_cmp_lg_u32 s27, 0\ns_cbranch_scc1 K1_DB")
    main(True, "A")
    a.label("K1_DEPI")
    a("s_waitcnt lgkmcnt(0) ; hz:barrier\ns_setprio 0\ns_nop 7\ns_nop 7")
    lg = Cnt(a, "lgkmcnt", 15)
    a("s_cmp_eq_u32 s24, 14\ns_cselect_b32 s3, 0, 1\ns_add_u32 s3, s3, s28\nv_add_u32 v162, s3, v24\nv_cmp_eq_u32 vcc, 0, v162")
    a("s_mul_i32 s39, s20, 9216\nv_mul_u32_u24 v163, 144, v24\nv_lshl_add_u32 v163, v23, 4, v163\nv_add_u32 v163, s39, v163")
    for rt in range(2):
        for p in range(2):
            for j in range(2):
                T = 32 + 8 * ((p * 2 + j) & 1)
                for e in range(8):
                    idx = j * 8 + e
                    ac = 64 + (rt * 2 + p) * 16 + idx
                    a(f"v_mul_f32 v{T+e}, v{ac}, v{128+rt*16+idx}")
                for e in range(8):
                    idx = j * 8 + e
                    a(f"v_fma_f32 v{T+e}, -v{160+p}, v{176+rt*16+idx}, v{T+e}")
                if p == 1:
                    for e in range(8):
                        idx = j * 8 + e
                        a(f"v_cndmask_b32 v{T+e}, v{T+e}, v{208+rt*16+idx}, vcc")
                O = 48 + 4 * ((p * 2 + j) & 3)
                for q in range(4): a(f"v_cvt_pk_bf16_f32 v{O+q}, v{T+2*q}, v{T+1+2*q}")
                a(f"ds_write_b128 v163, v[{O}:{O+3}] offset:{p*32*144 + (4*rt+2*j)*16}"); lg.issue()
    a("v_lshrrev_b32 v164, 3, v1\nv_and_b32 v165, 7, v1\nv_mul_u32_u24 v166, 144, v164\nv_lshl_add_u32 v166, v165, 4, v166\nv_add_u32 v166, s39, v166")
    a("v_lshlrev_b32 v167, 13, v164\nv_lshl_add_u32 v167, v165, 4, v167")
    a("""s_sub_u32 s3, s24, 14
         s_lshl_b32 s3, s3, 7
         s_lshl_b32 s31, s28, 5
         s_add_u32 s3, s3, s31
         s_lshl_b32 s38, s3, 13
         s_and_b32 s3, s23, 1
         s_lshl_b32 s3, s3, 11
         s_add_u32 s38, s38, s3
         s_lshr_b32 s3, s23, 1
         s_lshl_b32 s3, s3, 8
         s_add_u32 s38, s38, s3
         s_lshl_b32 s3, s27, 7
         s_add_u32 s38, s38, s3""")
    lg.wait(lg.n)
    toks = []
    for i in range(8):
        r = 64 + 4 * i
        a(f"ds_read_b128 v[{r}:{r+3}], v166 offset:{i*1152}"); toks.append(lg.issue())
    for i in range(8):
        r = 64 + 4 * i
        lg.wait(toks[i])
        a(f"s_add_u32 s3, s38, {(i & 3) * 8 * 8192 + (i >> 2) * 4096}")
        a(f"buffer_store_dwordx4 v[{r}:{r+3}], v167, s[52:55], s3 offen" + ST1)
    stamps_out()
    a("s_endpgm")
    a.label("K1_DB")
    a("s_nop 4 ; hz:barrier")
    slowD = main(True, "B")
    a("s_branch K1_DEPI")
    slowD()
    a.label("K1_END")
    lines, n = hz.fix(a.l)
    return "\n".join(lines), 244

K2_LDS = 4 * 64 * 272
def gen_k2(cfg):
    a = Asm()
    stamp = cfg.get("stamp", False); pre = cfg.get("pre2", 13)
    vm = Cnt(a, "vmcnt", 63); lg = Cnt(a, "lgkmcnt", 15)
    a("s_cmp_ge_u32 s2, 256\ns_cbranch_scc1 K2_END")
    a("s_load_dwordx2 s[4:5], s[0:1], 0\ns_load_dwordx2 s[6:7], s[0:1], 72\ns_load_dwordx2 s[18:19], s[0:1], 88")
    if stamp: a("s_memtime s[90:91]\ns_memrealtime s[92:93]\ns_mov_b64 s[86:87], 0\ns_mov_b64 s[88:89], 0")
    a("v_lshrrev_b32 v2, 6, v0\nv_and_b32 v1, 63, v0\nv_lshlrev_b32 v3, 4, v1\nv_readfirstlane_b32 s20, v2")
    a("s_and_b32 s21, s2, 7\ns_lshr_b32 s22, s2, 3\ns_lshl_b32 s23, s21, 2\ns_lshr_b32 s3, s22, 3\ns_add_u32 s23, s23, s3\ns_and_b32 s24, s22, 7")
    a("s_mul_i32 s3, s20, 28\ns_mul_i32 s25, s23, 112\ns_add_u32 s25, s25, s3\ns_lshl_b32 s25, s25, 11\ns_mul_i32 s26, s24, 112\ns_add_u32 s26, s26, s3\ns_lshl_b32 s26, s26, 11\ns_lshl_b32 s27, s2, 13")
    a("s_waitcnt lgkmcnt(0)")
    srd(a, 44, 18, 19, H_SZ, H_OFF)
    srd(a, 48, 18, 19, WT_SZ, WT_OFF)
    srd(a, 52, 18, 19, Z_SZ, Z_OFF)
    srd(a, 56, 18, 19, Y_SZ, Y_OFF)
    srd(a, 60, 18, 19, F_SZ, F_OFF)
    srd(a, 64, 4, 5, 0x200000)
    srd(a, 68, 6, 7, 0x200000)
    ZR, ZI = 64, 80
    a("s_add_u32 s28, s27, 4096")
    for f in range(4):
        a(f"buffer_load_dwordx4 v[{ZR+4*f}:{ZR+4*f+3}], v3, s[52:55], s27 offen offset:{f*1024}"); vm.issue()
    for f in range(4):
        a(f"buffer_load_dwordx4 v[{ZI+4*f}:{ZI+4*f+3}], v3, s[52:55], s28 offen offset:{f*1024}"); ztok = vm.issue()
    ktok = {}
    def loads(ks):
        r = (ks % 16) * 16
        o = (ks & 1) * 2048
        if ks and not (ks & 1): a("s_add_u32 s25, s25, 4096\ns_add_u32 s26, s26, 4096")
        a(f"buffer_load_dwordx4 a[{r}:{r+3}], v3, s[48:51], s26 offen offset:{o}"); vm.issue()
        a(f"buffer_load_dwordx4 a[{r+8}:{r+11}], v3, s[44:47], s25 offen offset:{o}"); vm.issue()
        a(f"buffer_load_dwordx4 a[{r+4}:{r+7}], v3, s[48:51], s26 offen offset:{o+1024}"); vm.issue()
        a(f"buffer_load_dwordx4 a[{r+12}:{r+15}], v3, s[44:47], s25 offen offset:{o+1024}"); ktok[ks] = vm.issue()
    nxt = 0
    for ks in range(pre): loads(ks); nxt += 1
    a("v_and_b32 v4, 15, v1\nv_lshrrev_b32 v5, 4, v1\ns_lshl_b32 s3, s20, 4\nv_add_u32 v6, s3, v4\ns_mov_b32 s40, 0x80008000")
    FR, FI, FN = 96, 104, 112
    TW = 120
    GC, GS = 136, 144
    tmp = 152
    a("v_lshlrev_b32 v7, 3, v5\nv_mul_u32_u24 v7, v7, v6")
    for ks in range(2):
        for j in range(8):
            t = tmp + j
            a(f"v_mad_u32_u24 v{t}, v6, {32*ks+j}, v7" if 32 * ks + j <= 64 else "ERR")
        for j in range(8): a(f"v_and_b32 v{tmp+j}, 63, v{tmp+j}")
        for j in range(8): a(f"v_cvt_f32_u32 v{tmp+j}, v{tmp+j}")
        for j in range(8): a(f"v_mul_f32 v{tmp+j}, 0x3c800000, v{tmp+j}")
        for j in range(8): a(f"v_sin_f32 v{tmp+8+j}, v{tmp+j}")
        for j in range(8): a(f"v_cos_f32 v{tmp+j}, v{tmp+j}")
        for i in range(4): a(f"v_cvt_pk_bf16_f32 v{FN+4*ks+i}, v{tmp+8+2*i}, v{tmp+9+2*i}")
        for i in range(4): a(f"v_cvt_pk_bf16_f32 v{FR+4*ks+i}, v{tmp+2*i}, v{tmp+1+2*i}")
        for i in range(4): a(f"v_xor_b32 v{FI+4*ks+i}, s40, v{FN+4*ks+i}")
    a("v_lshlrev_b32 v7, 2, v5\nv_mul_u32_u24 v7, v7, v6")
    for i in range(8):
        tile, r = i >> 2, i & 3
        a(f"v_mad_u32_u24 v{tmp+i}, v6, {16*tile+r}, v7")
    for i in range(8): a(f"v_cvt_f32_u32 v{tmp+i}, v{tmp+i}")
    for i in range(8): a(f"v_mul_f32 v{tmp+i}, 0x3a000000, v{tmp+i}")
    for i in range(8): a(f"v_cos_f32 v{TW+i}, v{tmp+i}")
    for i in range(8): a(f"v_sin_f32 v{TW+8+i}, v{tmp+i}")
    for t2 in range(2):
        a(f"v_add_u32 v8, {16*t2}, v4\nv_lshlrev_b32 v7, 2, v5\nv_mul_u32_u24 v7, v7, v8")
        for i in range(8):
            tile, r = i >> 2, i & 3
            a(f"v_mad_u32_u24 v{tmp+i}, v8, {16*tile+r}, v7")
        for i in range(8): a(f"v_and_b32 v{tmp+i}, 31, v{tmp+i}")
        for i in range(8): a(f"v_cvt_f32_u32 v{tmp+i}, v{tmp+i}")
        for i in range(8): a(f"v_mul_f32 v{tmp+i}, 0x3d000000, v{tmp+i}")
        for i in range(8): a(f"v_sin_f32 v{tmp+8+i}, v{tmp+i}")
        for i in range(8): a(f"v_cos_f32 v{tmp+i}, v{tmp+i}")
        for i in range(4): a(f"v_cvt_pk_bf16_f32 v{GS+4*t2+i}, v{tmp+8+2*i}, v{tmp+9+2*i}")
        for i in range(4): a(f"v_cvt_pk_bf16_f32 v{GC+4*t2+i}, v{tmp+2*i}, v{tmp+1+2*i}")
    a("v_lshlrev_b32 v9, 8, v4\nv_lshl_add_u32 v9, v5, 4, v9\ns_lshl_b32 s3, s20, 6\nv_add_u32 v9, s3, v9")
    a("s_mov_b32 s29, s27")
    a("s_mov_b32 s30, 0")
    vm.wait(ztok)
    if stamp: a("s_memtime s[94:95]")
    SV = 168
    a("s_cmp_lg_u32 s2, 0\ns_cbranch_scc1 K2_FFT")
    for i in range(16): a(f"v_mov_b32 v{SV+i}, v{ZI+i}")
    for i in range(16): a(f"v_mov_b32 v{ZI+i}, 0")
    a.label("K2_FFT")
    a("s_nop 1 ; hz:barrier")
    YR, YI = 184, 192
    for tile in range(2):
        for ks in range(2):
            f = tile * 2 + ks
            c = "0" if ks == 0 else f"v[{YR+4*tile}:{YR+4*tile+3}]"
            a(f"v_mfma_f32_16x16x32_bf16 v[{YR+4*tile}:{YR+4*tile+3}], v[{ZR+4*f}:{ZR+4*f+3}], v[{FR+4*ks}:{FR+4*ks+3}], {c}")
            c = "0" if ks == 0 else f"v[{YI+4*tile}:{YI+4*tile+3}]"
            a(f"v_mfma_f32_16x16x32_bf16 v[{YI+4*tile}:{YI+4*tile+3}], v[{ZR+4*f}:{ZR+4*f+3}], v[{FI+4*ks}:{FI+4*ks+3}], {c}")
        for ks in range(2):
            f = tile * 2 + ks
            a(f"v_mfma_f32_16x16x32_bf16 v[{YR+4*tile}:{YR+4*tile+3}], v[{ZI+4*f}:{ZI+4*f+3}], v[{FN+4*ks}:{FN+4*ks+3}], v[{YR+4*tile}:{YR+4*tile+3}]")
            a(f"v_mfma_f32_16x16x32_bf16 v[{YI+4*tile}:{YI+4*tile+3}], v[{ZI+4*f}:{ZI+4*f+3}], v[{FR+4*ks}:{FR+4*ks+3}], v[{YI+4*tile}:{YI+4*tile+3}]")
    for i in range(8): a(f"v_mul_f32 v{tmp+i}, v{YR+i}, v{TW+i}")
    for i in range(8): a(f"v_mul_f32 v{tmp+8+i}, v{YI+i}, v{TW+i}")
    for i in range(8): a(f"v_fmac_f32 v{tmp+i}, v{YI+i}, v{TW+8+i}")
    for i in range(8): a(f"v_fma_f32 v{tmp+8+i}, -v{YR+i}, v{TW+8+i}, v{tmp+8+i}")
    PR, PI = 200, 204
    for i in range(4): a(f"v_cvt_pk_bf16_f32 v{PR+i}, v{tmp+2*i}, v{tmp+1+2*i}")
    for i in range(4): a(f"v_cvt_pk_bf16_f32 v{PI+i}, v{tmp+8+2*i}, v{tmp+9+2*i}")
    OUT = 208
    for t2 in range(2):
        a(f"v_mfma_f32_16x16x32_bf16 v[{OUT+4*t2}:{OUT+4*t2+3}], v[{PR}:{PR+3}], v[{GC+4*t2}:{GC+4*t2+3}], 0")
    for t2 in range(2):
        a(f"v_mfma_f32_16x16x32_bf16 v[{OUT+4*t2}:{OUT+4*t2+3}], v[{PI}:{PI+3}], v[{GS+4*t2}:{GS+4*t2+3}], v[{OUT+4*t2}:{OUT+4*t2+3}]")
    a("s_add_u32 s31, s29, 4096")
    a(f"buffer_store_dwordx4 v[{OUT}:{OUT+3}], v9, s[56:59], s29 offen sc1")
    a(f"buffer_store_dwordx4 v[{OUT+4}:{OUT+7}], v9, s[56:59], s31 offen sc1")
    a("s_cmp_lg_u32 s2, 0\ns_cbranch_scc1 K2_FFT_DONE\ns_cmp_lg_u32 s30, 0\ns_cbranch_scc1 K2_FFT_W0")
    for i in range(16): a(f"v_mov_b32 v{ZR+i}, v{SV+i}")
    a(f"s_mov_b32 s30, 1\ns_mov_b32 s29, {256*8192}\ns_branch K2_FFT")
    a.label("K2_FFT_W0")
    a("s_waitcnt vmcnt(0)\nv_mov_b32 v10, 1\ns_lshl_b32 s3, s20, 2\ns_add_u32 s3, s3, 4096\nv_mov_b32 v11, s3\nbuffer_store_dword v10, v11, s[60:63], 0 offen sc1\ns_waitcnt vmcnt(0)")
    a.label("K2_FFT_DONE")
    a("s_nop 1 ; hz:barrier")
    vm.issue(); ytok = vm.issue()
    ACC = 0 + 0
    AC = [216 - 216 + 64 + 16 * i for i in range(4)]
    flag_done = False
    polled = False
    for ks in range(28):
        vm.wait(ktok[ks])
        if not flag_done and vm.done >= ytok:
            a("v_mov_b32 v10, 1\ns_lshl_b32 s3, s2, 4\ns_lshl_b32 s31, s20, 2\ns_add_u32 s3, s3, s31\nv_mov_b32 v11, s3\nbuffer_store_dword v10, v11, s[60:63], 0 offen sc1"); vm.issue()
            flag_done = True
        r = (ks % 16) * 16
        for et in range(2):
            for tt in range(2):
                ac = AC[et * 2 + tt]
                c = "0" if ks == 0 else f"v[{ac}:{ac+15}]"
                a(f"v_mfma_f32_32x32x16_bf16 v[{ac}:{ac+15}], a[{r+4*et}:{r+4*et+3}], a[{r+8+4*tt}:{r+11+4*tt}], {c}")
        while nxt < 28 and nxt <= ks + 15 and vm.n - vm.done + 4 <= 60:
            loads(nxt); nxt += 1
    assert flag_done
    if stamp: a("s_memtime s[96:97]")
    a("""v_lshrrev_b32 v12, 2, v1
         v_and_b32 v13, 3, v1
         s_lshl_b32 s3, s23, 6
         s_lshl_b32 s31, s20, 4
         s_add_u32 s3, s3, s31
         v_add_u32 v14, s3, v12
         v_lshlrev_b32 v14, 10, v14
         v_lshl_add_u32 v14, v13, 4, v14
         s_lshl_b32 s32, s24, 7""")
    a("buffer_load_dwordx4 v[128:131], v14, s[64:67], s32 offen"); vm.issue()
    a("buffer_load_dwordx4 v[132:135], v14, s[64:67], s32 offen offset:64"); xtok = vm.issue()
    a("""v_and_b32 v15, 31, v1
         v_lshrrev_b32 v16, 5, v1
         s_lshl_b32 s3, s24, 6
         s_lshr_b32 s31, s20, 1
         s_lshl_b32 s31, s31, 5
         s_add_u32 s33, s3, s31
         v_add_u32 v17, s33, v15
         v_sub_u32 v18, 512, v17
         v_min_u32 v17, v17, v18
         v_lshlrev_b32 v17, 4, v17""")
    a("s_mov_b32 s36, 0")
    a.label("K2_POLL")
    if cfg.get("pollmax", 0):
        a(f"s_add_u32 s36, s36, 1\ns_cmp_gt_u32 s36, {cfg['pollmax']}\ns_cbranch_scc1 K2_POLL_OK")
    a("""buffer_load_dwordx4 v[20:23], v17, s[60:63], 0 offen sc1
         s_waitcnt vmcnt(0)
         v_and_b32 v20, v20, v21
         v_and_b32 v22, v22, v23
         v_and_b32 v20, v20, v22
         v_cmp_ne_u32 vcc, 1, v20
         s_cbranch_vccz K2_POLL_OK
         s_sleep 2
         s_branch K2_POLL""")
    a.label("K2_POLL_OK")
    a("s_nop 1 ; hz:barrier")
    vm.done = vm.n
    a("""s_lshl_b32 s3, s23, 6
         s_and_b32 s31, s20, 1
         s_lshl_b32 s31, s31, 5
         s_add_u32 s3, s3, s31
         v_add_u32 v18, s3, v15
         v_sub_u32 v19, 2048, v18
         v_and_b32 v19, 2047, v19
         v_lshlrev_b32 v24, 2, v16
         v_add_u32 v24, s33, v24
         v_sub_u32 v25, 512, v24
         s_movk_i32 s34, 8192
         s_movk_i32 s3, -8192
         s_cmp_ge_u32 s24, 4
         s_cselect_b64 vcc, -1, 0
         s_cselect_b32 s34, s3, s34
         v_cndmask_b32 v18, v18, v19, vcc
         v_cndmask_b32 v24, v24, v25, vcc
         v_lshlrev_b32 v24, 13, v24
         v_lshl_add_u32 v24, v18, 2, v24""")
    YV = 136
    for g in range(4):
        for r in range(4):
            i = g * 4 + r
            if i == 0: a("v_mov_b32 v26, v24")
            else: a(f"s_mul_i32 s3, s34, {8*g+r}\nv_add_u32 v26, s3, v24")
            a(f"buffer_load_dword v{YV+i}, v26, s[56:59], 0 offen sc1"); vm.issue()
    a(f"s_mul_i32 s35, s20, {64*272}\nv_mul_u32_u24 v27, 272, v15\nv_lshl_add_u32 v27, v16, 4, v27\nv_add_u32 v27, s35, v27")
    def wr_tile(ti):
        et, tt = ti >> 1, ti & 1
        for g in range(4):
            ac = AC[ti] + 4 * g
            a(f"ds_write_b128 v27, v[{ac}:{ac+3}] offset:{tt*32*272 + et*128 + g*32}"); lg.issue()
    for w in range(4):
        a(f"s_cmp_lg_u32 s20, {w}\ns_cbranch_scc1 K2_W{w}")
        for ti in range(4):
            if ti != w: wr_tile(ti)
        a("s_waitcnt vmcnt(0)")
        for i in range(16): a(f"v_add_f32 v{AC[w]+i}, v{AC[w]+i}, v{YV+i}")
        wr_tile(w)
        a("s_branch K2_WD")
        a.label(f"K2_W{w}")
        a("s_nop 0 ; hz:barrier")
    a.label("K2_WD")
    a("s_waitcnt lgkmcnt(0) ; hz:barrier\ns_barrier")
    a(f"s_lshl_b32 s3, s20, 4\nv_add_u32 v28, s3, v12\nv_mul_u32_u24 v28, 272, v28\nv_lshl_add_u32 v28, v13, 5, v28")
    R = 64
    for half in range(2):
        for p in range(4):
            for q in range(2):
                r = R + ((half * 4 + p) * 2 + q) * 4
                off = p * 64 * 272 + half * 128 + q * 16
                a(f"ds_read_b128 v[{r}:{r+3}], v28 offset:{off}")
    for half in range(2):
        a(f"s_waitcnt lgkmcnt({8 if half == 0 else 0})")
        b = R + half * 32
        for i in range(8): a(f"v_add_f32 v{b+i}, v{b+i}, v{b+8+i}")
        for i in range(8): a(f"v_add_f32 v{b+16+i}, v{b+16+i}, v{b+24+i}")
        x = 128 + 4 * half
        for i in range(4): a(f"v_lshlrev_b32 v{160+2*i}, 16, v{x+i}\nv_and_b32 v{161+2*i}, 0xffff0000, v{x+i}")
        for i in range(8): a(f"v_add_f32 v{b+i}, v{b+i}, v{b+16+i}")
        for i in range(8): a(f"v_add_f32 v{b+i}, v{b+i}, v{160+i}")
        O = 168 + 4 * half
        for i in range(4): a(f"v_cvt_pk_bf16_f32 v{O+i}, v{b+2*i}, v{b+1+2*i}")
        a(f"buffer_store_dwordx4 v[{O}:{O+3}], v14, s[68:71], s32 offen offset:{64*half}")
    if stamp: stamp_store(a, 1, "K2_END")
    a.label("K2_END")
    lines, n = hz.fix(a.l)
    return "\n".join(lines), 512


def gen_k2b(cfg):
    a = Asm()
    stamp = cfg.get("stamp", False)
    D = cfg.get("depth", 8)
    CPL = cfg.get("cpl", 12)
    PKS = cfg.get("pks", 20)
    PMAX = cfg.get("pollmax", 2000000)
    vm = Cnt(a, "vmcnt", 63); lg = Cnt(a, "lgkmcnt", 15)
    L = lambda txt: [x.strip() for x in txt.split("\n") if x.strip()]
    q4 = lambda r: f"v[{r}:{r+3}]"
    a("s_cmp_ge_u32 s2, 256\ns_cbranch_scc1 K2_END")
    a("s_load_dwordx2 s[18:19], s[0:1], 88\ns_load_dwordx2 s[4:5], s[0:1], 0\ns_load_dwordx2 s[6:7], s[0:1], 72")
    if stamp: a("s_memtime s[90:91]\ns_memrealtime s[92:93]\ns_mov_b64 s[86:87], 0\ns_mov_b64 s[88:89], 0")
    a("v_lshrrev_b32 v2, 6, v0\nv_and_b32 v1, 63, v0\nv_lshlrev_b32 v3, 4, v1\nv_readfirstlane_b32 s20, v2")
    a("s_and_b32 s21, s2, 7\ns_lshr_b32 s22, s2, 3\ns_lshl_b32 s23, s21, 2\ns_lshr_b32 s3, s22, 3\ns_add_u32 s23, s23, s3\ns_and_b32 s24, s22, 7")
    a("s_mul_i32 s3, s20, 28\ns_mul_i32 s25, s23, 112\ns_add_u32 s25, s25, s3\ns_lshl_b32 s25, s25, 11\ns_mul_i32 s26, s24, 112\ns_add_u32 s26, s26, s3\ns_lshl_b32 s26, s26, 11\ns_lshl_b32 s27, s2, 13\ns_add_u32 s28, s27, 4096")
    ROT = cfg.get("rot", 0)
    if ROT:
        ra, rb = {1: (7, 14), 2: (7, 0), 3: (0, 14), 4: (2, 4), 5: (4, 2)}[ROT]
        a(f"""s_add_u32 s29, s25, {28*2048}
              s_mul_i32 s3, s24, {ra}
              s_and_b32 s42, s23, 3
              s_mul_i32 s42, s42, {rb}
              s_add_u32 s3, s3, s42
              s_lshr_b32 s3, s3, 2
              s_cmp_ge_u32 s3, 14
              s_cselect_b32 s42, 14, 0
              s_sub_u32 s3, s3, s42
              s_lshl_b32 s3, s3, 12
              s_add_u32 s25, s25, s3
              s_add_u32 s26, s26, s3""")
    a(f"s_mov_b32 s54, {Z_SZ}\ns_mov_b32 s55, 0x20000\ns_mov_b32 s46, {H_SZ}\ns_mov_b32 s47, 0x20000\ns_mov_b32 s50, {WT_SZ}\ns_mov_b32 s51, 0x20000")
    a("s_waitcnt lgkmcnt(0)")
    a(f"s_add_u32 s52, s18, {Z_OFF}\ns_addc_u32 s53, s19, 0")
    ZR, ZI = 64, 80
    for f in range(4):
        a(f"buffer_load_dwordx4 {q4(ZR+4*f)}, v3, s[52:55], s27 offen offset:{f*1024}"); vm.issue()
    for f in range(4):
        a(f"buffer_load_dwordx4 {q4(ZI+4*f)}, v3, s[52:55], s28 offen offset:{f*1024}"); ztok = vm.issue()
    a(f"s_mov_b32 s44, s18\ns_mov_b32 s45, s19\ns_add_u32 s48, s18, {WT_OFF}\ns_addc_u32 s49, s19, 0")
    ktok = {}; LQ = []
    for ks in range(28):
        r = (ks % 16) * 16; o = (ks & 1) * 2048
        for i, (rr, sd, so, oo) in enumerate(((r, 48, 26, o), (r + 8, 44, 25, o), (r + 4, 48, 26, o + 1024), (r + 12, 44, 25, o + 1024))):
            pre = ""
            if i == 0 and ks and not (ks & 1):
                pre = "s_add_u32 s25, s25, 4096\ns_add_u32 s26, s26, 4096\n"
                if ROT: pre += f"s_cmp_eq_u32 s25, s29\ns_cselect_b32 s42, {28*2048}, 0\ns_sub_u32 s25, s25, s42\ns_sub_u32 s26, s26, s42\n"
            LQ.append((ks, i, pre + f"buffer_load_dwordx4 a[{rr}:{rr+3}], v3, s[{sd}:{sd+3}], s{so} offen offset:{oo}"))
    st = {"cons": -1}
    T = {}
    def load1(limit=None):
        if not LQ: return False
        ks, i, t = LQ[0]
        if ks > st["cons"] + 16 or vm.n - vm.done >= 60: return False
        if limit is not None and ks > limit: return False
        LQ.pop(0); a(t); tok = vm.issue()
        if i == 3:
            ktok[ks] = tok
            if ks == PKS: poll_issue()
        return True
    FR, FI, FN = 96, 104, 112
    TW = 120
    GC, GS = 136, 144
    tmp = 152
    C = L(f"""v_and_b32 v4, 15, v1
              v_lshrrev_b32 v5, 4, v1
              s_lshl_b32 s3, s20, 4
              v_add_u32 v6, s3, v4
              v_cvt_f32_u32 v10, v6
              v_cvt_f32_u32 v11, v5
              v_cvt_f32_u32 v12, v4
              v_mul_f32 v10, 0x3c800000, v10
              v_mul_f32 v12, 0x3d000000, v12
              v_mul_f32 v14, v10, v11
              v_mul_f32 v14, 0x41000000, v14
              v_and_b32 v7, 1, v1
              s_mov_b32 s40, 0x80008000
              v_mul_lo_u32 v7, v7, s40""")
    C += [f"v_fmamk_f32 v{tmp+j}, v10, {fbits(float(j))}, v14" for j in range(8)]
    C += [f"v_fract_f32 v{tmp+j}, v{tmp+j}" for j in range(8)]
    C += [f"v_sin_f32 v{tmp+8+j}, v{tmp+j}" for j in range(8)]
    C += [f"v_cos_f32 v{tmp+j}, v{tmp+j}" for j in range(8)]
    C += [f"v_cvt_pk_bf16_f32 v{FN+i}, v{tmp+8+2*i}, v{tmp+9+2*i}" for i in range(4)]
    C += [f"v_cvt_pk_bf16_f32 v{FR+i}, v{tmp+2*i}, v{tmp+1+2*i}" for i in range(4)]
    C += [f"v_xor_b32 v{FI+i}, s40, v{FN+i}" for i in range(4)]
    for b in (FR, FI, FN): C += [f"v_xor_b32 v{b+4+i}, v7, v{b+i}" for i in range(4)]
    n2s = [16 * (i >> 2) + (i & 3) for i in range(8)]
    C += L("v_mul_f32 v10, 0x3d000000, v10\nv_mul_f32 v14, v10, v11\nv_mul_f32 v14, 4.0, v14")
    C += [f"v_fmamk_f32 v{tmp+i}, v10, {fbits(float(n2s[i]))}, v14" for i in range(8)]
    C += [f"v_cos_f32 v{TW+i}, v{tmp+i}" for i in range(8)]
    C += [f"v_sin_f32 v{TW+8+i}, v{tmp+i}" for i in range(8)]
    C += L("v_mul_f32 v14, v12, v11\nv_mul_f32 v14, 4.0, v14\ns_mov_b32 s41, 0x80000000")
    C += [f"v_fmamk_f32 v{tmp+i}, v12, {fbits(float(i))}, v14" for i in range(4)]
    C += [f"v_fract_f32 v{tmp+i}, v{tmp+i}" for i in range(4)]
    C += [f"v_sin_f32 v{tmp+4+i}, v{tmp+i}" for i in range(4)]
    C += [f"v_cos_f32 v{tmp+i}, v{tmp+i}" for i in range(4)]
    C += [f"v_cvt_pk_bf16_f32 v{GS+i}, v{tmp+4+2*i}, v{tmp+5+2*i}" for i in range(2)]
    C += [f"v_cvt_pk_bf16_f32 v{GC+i}, v{tmp+2*i}, v{tmp+1+2*i}" for i in range(2)]
    for b in (GC, GS): C += [f"v_xor_b32 v{b+2+i}, v7, v{b+i}" for i in range(2)]
    for b in (GC, GS): C += [f"v_xor_b32 v{b+4+i}, s41, v{b+i}" for i in range(4)]
    C += L("""v_lshlrev_b32 v9, 8, v4
              v_lshl_add_u32 v9, v5, 4, v9
              s_lshl_b32 s3, s20, 6
              v_add_u32 v9, s3, v9""")
    b = Asm(); srd(b, 56, 18, 19, Y_SZ, Y_OFF); srd(b, 60, 18, 19, F_SZ, F_OFF); srd(b, 64, 4, 5, 0x200000); srd(b, 68, 6, 7, 0x200000)
    C += [x.strip() for x in b.l]
    w = 0
    while C:
        x = C.pop(0); a(x)
        w += 4 if x.startswith(("v_sin", "v_cos")) else 1
        if w >= CPL: load1(); w = 0
    vm.wait(ztok)
    if stamp: a("s_memtime s[94:95]")
    SV = 168
    a("s_cmp_lg_u32 s2, 0\ns_cbranch_scc1 K2_FFT")
    for i in range(16): a(f"v_mov_b32 v{SV+i}, v{ZI+i}")
    for i in range(16): a(f"v_mov_b32 v{ZI+i}, 0")
    a.label("K2_FFT")
    a("s_nop 1 ; hz:barrier")
    YR, YI, PR, PI, OUT = 184, 192, 200, 204, 208
    M16 = "v_mfma_f32_16x16x32_bf16"
    def fft(zr, zi, so0, so1, ld):
        n = [0]
        def m(t):
            a(t); n[0] += 1
            if ld and n[0] % cfg.get("fpl", 3) == 0: load1()
        for ks in range(2):
            for tile in range(2):
                f = tile * 2 + ks
                m(f"{M16} {q4(YR+4*tile)}, {q4(zr+4*f)}, {q4(FR+4*ks)}, {'0' if ks == 0 else q4(YR+4*tile)}")
                m(f"{M16} {q4(YI+4*tile)}, {q4(zr+4*f)}, {q4(FI+4*ks)}, {'0' if ks == 0 else q4(YI+4*tile)}")
        if zi is not None:
            for ks in range(2):
                for tile in range(2):
                    f = tile * 2 + ks
                    m(f"{M16} {q4(YR+4*tile)}, {q4(zi+4*f)}, {q4(FN+4*ks)}, {q4(YR+4*tile)}")
                    m(f"{M16} {q4(YI+4*tile)}, {q4(zi+4*f)}, {q4(FR+4*ks)}, {q4(YI+4*tile)}")
        for i in range(8): a(f"v_mul_f32 v{tmp+i}, v{YR+i}, v{TW+i}")
        for i in range(8): a(f"v_mul_f32 v{tmp+8+i}, v{YI+i}, v{TW+i}")
        if ld: load1()
        for i in range(8): a(f"v_fmac_f32 v{tmp+i}, v{YI+i}, v{TW+8+i}")
        for i in range(8): a(f"v_fma_f32 v{tmp+8+i}, -v{YR+i}, v{TW+8+i}, v{tmp+8+i}")
        if ld: load1()
        for i in range(4): a(f"v_cvt_pk_bf16_f32 v{PR+i}, v{tmp+2*i}, v{tmp+1+2*i}")
        for i in range(4): a(f"v_cvt_pk_bf16_f32 v{PI+i}, v{tmp+8+2*i}, v{tmp+9+2*i}")
        for t2 in range(2): a(f"{M16} {q4(OUT+4*t2)}, {q4(PR)}, {q4(GC+4*t2)}, 0")
        for t2 in range(2): a(f"{M16} {q4(OUT+4*t2)}, {q4(PI)}, {q4(GS+4*t2)}, {q4(OUT+4*t2)}")
        if ld: load1()
        a(f"buffer_store_dwordx4 {q4(OUT)}, v9, s[56:59], {so0} offen sc1")
        a(f"buffer_store_dwordx4 {q4(OUT+4)}, v9, s[56:59], {so1} offen sc1")
    fft(ZR, ZI, "s27", "s28", True); vm.issue(); vm.issue()
    a("s_cmp_eq_u32 s2, 0\ns_cbranch_scc1 K2_F256")
    a.label("K2_FFT_DONE")
    a("s_nop 1 ; hz:barrier")
    if stamp: a("s_memtime s[86:87]")
    assert load1(); ytok = vm.n
    A2 = L(f"""v_lshrrev_b32 v12, 2, v1
         v_and_b32 v13, 3, v1
         s_lshl_b32 s3, s23, 6
         s_lshl_b32 s31, s20, 4
         s_add_u32 s3, s3, s31
         v_add_u32 v14, s3, v12
         v_lshlrev_b32 v14, 10, v14
         v_lshl_add_u32 v14, v13, 4, v14
         s_lshl_b32 s32, s24, 7
         v_and_b32 v15, 31, v1
         v_lshrrev_b32 v16, 5, v1
         s_lshl_b32 s3, s24, 6
         s_lshr_b32 s31, s20, 1
         s_lshl_b32 s31, s31, 5
         s_add_u32 s33, s3, s31
         v_add_u32 v17, s33, v15
         v_sub_u32 v18, 512, v17
         v_min_u32 v17, v17, v18
         v_lshlrev_b32 v17, 4, v17
         s_lshl_b32 s3, s23, 6
         s_and_b32 s31, s20, 1
         s_lshl_b32 s31, s31, 5
         s_add_u32 s3, s3, s31
         v_add_u32 v18, s3, v15
         v_sub_u32 v19, 2048, v18
         v_and_b32 v19, 2047, v19
         v_lshlrev_b32 v24, 2, v16
         v_add_u32 v24, s33, v24
         v_sub_u32 v25, {512-27}, v24
         s_movk_i32 s34, 8192
         s_movk_i32 s3, -8192
         s_cmp_ge_u32 s24, 4
         s_cselect_b64 vcc, -1, 0
         s_cselect_b32 s34, s3, s34
         s_cselect_b32 s37, {27*8192}, 0
         v_cndmask_b32 v18, v18, v19, vcc
         v_cndmask_b32 v24, v24, v25, vcc
         v_lshlrev_b32 v24, 13, v24
         v_lshl_add_u32 v24, v18, 2, v24
         s_mul_i32 s38, s34, 5
         s_mul_i32 s35, s20, {64*272}
         v_mul_u32_u24 v27, 272, v15
         v_lshl_add_u32 v27, v16, 4, v27
         v_add_u32 v27, s35, v27
         s_lshl_b32 s3, s20, 4
         v_add_u32 v28, s3, v12
         v_mul_u32_u24 v28, 272, v28
         v_lshl_add_u32 v28, v13, 5, v28
         v_mov_b32 v10, 1
         s_lshl_b32 s3, s2, 4
         s_lshl_b32 s31, s20, 2
         s_add_u32 s3, s3, s31
         v_mov_b32 v11, s3
         s_add_u32 s3, s31, 4096
         v_mov_b32 v8, s3
         s_mov_b32 s36, 0""")
    for x in A2: a(x)
    YV = 136
    def poll_issue():
        a("buffer_load_dwordx4 v[20:23], v17, s[60:63], 0 offen sc1"); T["poll"] = vm.issue()
    def poll_eval():
        a("v_and_b32 v20, v20, v21\nv_and_b32 v22, v22, v23\nv_and_b32 v20, v20, v22\nv_cmp_ne_u32 s[30:31], 1, v20")
    def yl():
        o = ["s_mov_b32 s39, s37"]
        for i in range(16):
            o.append(f"buffer_load_dword v{YV+i}, v24, s[56:59], s39 offen sc1")
            if i < 15: o.append(f"s_add_u32 s39, s39, {'s38' if i % 4 == 3 else 's34'}")
        return o
    AC = [64 + 16 * i for i in range(4)]
    flag_done = False; YQ = None
    for ks in range(28):
        vm.wait(ktok[ks])
        if not flag_done and vm.done >= ytok:
            a("buffer_store_dword v10, v11, s[60:63], 0 offen sc1"); vm.issue()
            a(f"s_cmp_lg_u32 s2, 0\ns_cbranch_scc1 K2_NF\nbuffer_store_dword v10, v8, s[60:63], 0 offen sc1")
            a.label("K2_NF")
            flag_done = True
            if stamp: a("s_memtime s[88:89]")
        if YQ is None and "poll" in T and vm.done >= T["poll"]:
            poll_eval()
            YQ = yl() + ["buffer_load_dwordx4 v[128:131], v14, s[64:67], s32 offen", "buffer_load_dwordx4 v[132:135], v14, s[64:67], s32 offen offset:64"]
        r = (ks % 16) * 16
        for et in range(2):
            for tt in range(2):
                ac = AC[et * 2 + tt]
                c = "0" if ks == 0 else f"v[{ac}:{ac+15}]"
                a(f"v_mfma_f32_32x32x16_bf16 v[{ac}:{ac+15}], a[{r+4*et}:{r+4*et+3}], a[{r+8+4*tt}:{r+11+4*tt}], {c}")
                n = 0
                while n < 2 and load1(ks + D): n += 1
                n = 0
                while YQ and not LQ and n < cfg.get("ypm", 4):
                    x = YQ.pop(0); a(x)
                    if x.startswith("buffer"): vm.issue(); n += 1
        st["cons"] = ks
    assert flag_done and not LQ and YQ is not None
    for x in YQ: a(x)
    if stamp: a("s_memtime s[96:97]")
    def wr_tile(ti):
        et, tt = ti >> 1, ti & 1
        for g in range(4):
            ac = AC[ti] + 4 * g
            a(f"ds_write_b128 v27, v[{ac}:{ac+3}] offset:{tt*32*272 + et*128 + g*32}")
    for w_ in range(4):
        if w_ < 3: a(f"s_cmp_lg_u32 s20, {w_}\ns_cbranch_scc1 K2_W{w_}")
        for ti in range(4):
            if ti != w_: wr_tile(ti)
        a(f"s_cmp_lg_u64 s[30:31], 0\ns_cbranch_scc0 K2_YOK{w_}\ns_branch K2_SLOW")
        a.label(f"K2_YOK{w_}")
        a("s_waitcnt vmcnt(0) ; hz:barrier")
        for i in range(16): a(f"v_add_f32 v{AC[w_]+i}, v{AC[w_]+i}, v{YV+i}")
        wr_tile(w_)
        if w_ < 3:
            a("s_branch K2_WD")
            a.label(f"K2_W{w_}")
            a("s_nop 0 ; hz:barrier")
    a.label("K2_WD")
    a("s_waitcnt lgkmcnt(0) ; hz:barrier\ns_barrier")
    R = 64
    for half in range(2):
        for p in range(4):
            for q in range(2):
                r = R + ((half * 4 + p) * 2 + q) * 4
                off = p * 64 * 272 + half * 128 + q * 16
                a(f"ds_read_b128 v[{r}:{r+3}], v28 offset:{off}")
    for half in range(2):
        x = 128 + 4 * half
        for i in range(4): a(f"v_lshlrev_b32 v{160+8*half+2*i}, 16, v{x+i}\nv_and_b32 v{161+8*half+2*i}, 0xffff0000, v{x+i}")
    for half in range(2):
        a(f"s_waitcnt lgkmcnt({8 if half == 0 else 0})")
        b_ = R + half * 32
        for i in range(8): a(f"v_add_f32 v{b_+i}, v{b_+i}, v{b_+8+i}")
        for i in range(8): a(f"v_add_f32 v{b_+16+i}, v{b_+16+i}, v{b_+24+i}")
        for i in range(8): a(f"v_add_f32 v{b_+i}, v{b_+i}, v{160+8*half+i}")
        for i in range(8): a(f"v_add_f32 v{b_+i}, v{b_+i}, v{b_+16+i}")
        O = 176 + 4 * half
        for i in range(4): a(f"v_cvt_pk_bf16_f32 v{O+i}, v{b_+2*i}, v{b_+1+2*i}")
        a(f"buffer_store_dwordx4 v[{O}:{O+3}], v14, s[68:71], s32 offen offset:{64*half}")
    if stamp: stamp_store(a, 1, "K2_END")
    a("s_endpgm")
    a.label("K2_SLOW")
    a("s_nop 1 ; hz:barrier")
    a.label("K2_POLL")
    a(f"s_add_u32 s36, s36, 1\ns_cmp_gt_u32 s36, {PMAX}\ns_cbranch_scc1 K2_POLL_OK")
    a("buffer_load_dwordx4 v[20:23], v17, s[60:63], 0 offen sc1\ns_waitcnt vmcnt(0)")
    poll_eval()
    a("s_cmp_lg_u64 s[30:31], 0\ns_cbranch_scc0 K2_POLL_OK\ns_sleep 2\ns_branch K2_POLL")
    a.label("K2_POLL_OK")
    a("s_nop 1 ; hz:barrier")
    for x in yl(): a(x)
    for w_ in range(3): a(f"s_cmp_eq_u32 s20, {w_}\ns_cbranch_scc1 K2_YOK{w_}")
    a("s_branch K2_YOK3")
    a.label("K2_F256")
    a(f"s_mov_b32 s43, {256*8192} ; hz:barrier\ns_mov_b32 s30, {256*8192+4096}\ns_nop 7")
    fft(SV, None, "s43", "s30", False)
    a("s_branch K2_FFT_DONE")
    a.label("K2_END")
    lines, n = hz.fix(a.l)
    return "\n".join(lines), 512

HEADER = open("parallel_sum__spectral_fnet__geglu_ffn__prompt.s.ref").read().split("; Override launch")[0]

def build(cfg):
    k1, v1 = gen_k1(cfg)
    k2, v2 = (gen_k2b if cfg.get('k2', 2) == 2 else gen_k2)(cfg)
    out = HEADER
    out += f"; @launch kernel=fnet_g1_kernel grid=(256,1,1) block=(512,1,1) lds={K1_LDS}\n"
    out += f"; @launch kernel=fnet_g2_kernel grid=(256,1,1) block=(256,1,1) lds={K2_LDS}\n"
    if cfg.get("k2twice"): out += f"; @launch kernel=fnet_g2_kernel grid=(256,1,1) block=(256,1,1) lds={K2_LDS}\n"
    out += HDR + kern("fnet_g1_kernel", k1) + kern("fnet_g2_kernel", k2)
    out += '.section .rodata,"a"\n' + kd("fnet_g1_kernel", v1, 102, 244) + kd("fnet_g2_kernel", 512, 102, 256)
    return out

if __name__ == "__main__":
    cfg = {}
    for kv in sys.argv[2:]:
        k, v = kv.split("=")
        cfg[k] = int(v) if v.lstrip("-").isdigit() else v
    open(sys.argv[1], "w").write(build(cfg))
```

```python
import sys, math
from asmlib import Asm, kd, kern, HDR
import hz

H_OFF, H_SZ = 0x0, 32 * 112 * 2 * 1024
WT_OFF, WT_SZ = 0x800000, 8 * 112 * 2 * 1024
Z_OFF, Z_SZ = 0xA00000, 256 * 2 * 4096
Y_OFF, Y_SZ = 0xC00000, 257 * 8192
F_OFF, F_SZ = 0xF00000, 257 * 16
RT_REL, CT_REL, FT_SZ = 0x10000, 0x20000, 0x30000
DBG_OFF = 0x1000000

class Cnt:
    def __init__(self, a, name, cap):
        self.a, self.name, self.cap = a, name, cap
        self.n = 0
        self.done = 0
    def issue(self):
        self.n += 1
        return self.n
    def need(self, tok):
        if tok is None or tok <= self.done: return None
        return self.n - tok
    def wait(self, tok):
        k = self.need(tok)
        if k is None: return
        k = min(k, self.cap)
        self.a(f"s_waitcnt {self.name}({k})")
        self.done = max(self.done, self.n - k)
    def mark(self, tok):
        if tok is not None: self.done = max(self.done, tok)

def wait2(a, vm, vt, lg, lt):
    parts = []
    k = vm.need(vt)
    if k is not None:
        k = min(k, vm.cap); parts.append(f"vmcnt({k})"); vm.done = max(vm.done, vm.n - k)
    k = lg.need(lt)
    if k is not None:
        k = min(k, lg.cap); parts.append(f"lgkmcnt({k})"); lg.done = max(lg.done, lg.n - k)
    if parts: a("s_waitcnt " + " ".join(parts))

def interleave(a, main, fill):
    n = len(main); f = len(fill); p = 0
    for i, m in enumerate(main):
        a(m)
        q = (f * (i + 1)) // n
        while p < q:
            a(fill[p]); p += 1

def srd(a, d, lo, hi, size, off=0):
    if off:
        a(f"s_add_u32 s{d}, s{lo}, {off}\ns_addc_u32 s{d+1}, s{hi}, 0")
    else:
        a(f"s_mov_b32 s{d}, s{lo}\ns_mov_b32 s{d+1}, s{hi}")
    a(f"s_mov_b32 s{d+2}, {size}\ns_mov_b32 s{d+3}, 0x20000")

def stamp_store(a, kidx, endlabel):
    a("s_memtime s[98:99]\ns_memrealtime s[100:101]\ns_waitcnt lgkmcnt(0)")
    a("s_sub_u32 s94, s94, s90\ns_sub_u32 s96, s96, s90\ns_sub_u32 s98, s98, s90\ns_sub_u32 s86, s86, s90\ns_sub_u32 s88, s88, s90")
    srd(a, 44, 18, 19, 65536, DBG_OFF)
    a("v_mov_b32 v8, s92\nv_mov_b32 v9, s100\nv_mov_b32 v10, s98\nv_mov_b32 v11, s94\nv_mov_b32 v12, s96\nv_mov_b32 v13, s86\nv_mov_b32 v14, s88\ns_sub_u32 s84, s84, s90\nv_mov_b32 v15, s84")
    a(f"s_lshl_b32 s3, s2, 5\ns_add_u32 s3, s3, {kidx*8192}\nv_mov_b32 v16, s3")
    a(f"s_cmp_lg_u32 s20, 0\ns_cbranch_scc1 {endlabel}\nbuffer_store_dwordx4 v[8:11], v16, s[44:47], 0 offen\nbuffer_store_dwordx4 v[12:15], v16, s[44:47], 0 offen offset:16")

WB, WSL = 49152, 16384
SCR = WB + 6 * WSL
FIN = SCR + 2048
CS = SCR + 4096 + 2048
STW = SCR + 8192 + 2048
K1_LDS = SCR + 16384
EP_REL = 0
K0C = -2.0 * math.sqrt(2.0 / math.pi) * math.log2(math.e)
K1C = K0C * 0.044715
def fbits(x):
    import struct
    return "0x%08x" % struct.unpack("<I", struct.pack("<f", x))[0]

def gen_k1(cfg):
    a = Asm()
    ST1 = {0: "", 1: " sc1", 2: " nt", 3: " sc0 sc1"}[cfg.get("st1", 1)]
    STH = {0: "", 1: " sc1", 2: " nt", 3: " sc0 sc1"}[cfg.get("sth", 1)]
    STF = {0: "", 1: " sc1", 2: " nt", 3: " sc0 sc1"}[cfg.get("stf", 1)]
    stamp = cfg.get("stamp", False)
    POLL_S = cfg.get("poll_s", 10)
    exp = 2 if cfg.get("force_fb") else 1
    q4 = lambda r: f"v[{r}:{r+3}]"
    d2 = lambda r: f"v[{r}:{r+1}]"
    M16 = "v_mfma_f32_16x16x32_bf16"
    stride, wsz = 3584, 1835008
    a("s_cmp_ge_u32 s2, 256\ns_cbranch_scc1 K1_END")
    a("""s_load_dwordx2 s[4:5], s[0:1], 0
         s_load_dwordx4 s[12:15], s[0:1], 48
         s_load_dwordx2 s[16:17], s[0:1], 64
         s_load_dwordx4 s[72:75], s[0:1], 80""")
    if stamp: a("s_memtime s[90:91]\ns_memrealtime s[92:93]\ns_mov_b64 s[86:87], 0\ns_mov_b64 s[88:89], 0\ns_mov_b64 s[84:85], 0")
    a("v_lshrrev_b32 v2, 6, v0\nv_and_b32 v1, 63, v0\ns_mov_b32 s40, 0xffff0000\nv_readfirstlane_b32 s20, v2")
    a("s_and_b32 s21, s2, 7\ns_lshr_b32 s22, s2, 3")
    a("s_lshr_b32 s27, s20, 2\ns_and_b32 s28, s20, 3")
    a("""v_and_b32 v20, 3, v1
         v_lshrrev_b32 v21, 2, v1
         v_lshrrev_b32 v22, 4, v1
         v_lshrrev_b32 v26, 3, v1
         v_and_b32 v27, 7, v1
         v_lshlrev_b32 v25, 4, v1""")
    a("s_mov_b32 s46, 0x200000\ns_mov_b32 s47, 0x20000")
    a("s_cmp_lt_u32 s22, 4\ns_cbranch_scc1 K1_FFT")
    a("""s_sub_u32 s22, s22, 4
         s_and_b32 s23, s21, 3
         s_lshl_b32 s23, s23, 2
         s_and_b32 s3, s22, 3
         s_add_u32 s23, s23, s3
         s_lshr_b32 s24, s21, 2
         s_mul_i32 s24, s24, 7
         s_lshr_b32 s3, s22, 2
         s_add_u32 s24, s24, s3
         s_lshl_b32 s83, s24, 8""")

    def L(txt): return [x.strip() for x in txt.split("\n") if x.strip()]

    def setup_frag():
        a("v_lshrrev_b32 v23, 5, v1\nv_and_b32 v24, 31, v1")
        a("""v_lshrrev_b32 v14, 1, v24
             v_and_b32 v14, 7, v14
             v_xor_b32 v14, v14, v23
             v_lshlrev_b32 v14, 4, v14
             v_lshlrev_b32 v15, 7, v24
             s_lshl_b32 s3, s27, 13
             v_add3_u32 v14, v14, v15, s3
             v_xor_b32 v15, 32, v14
             v_xor_b32 v16, 64, v14
             v_xor_b32 v17, 0x60, v14""")
        a(f"""v_and_b32 v29, 3, v21
              v_and_b32 v5, 1, v22
              v_lshlrev_b32 v5, 5, v5
              v_lshl_add_u32 v6, v20, 3, v5
              v_lshlrev_b32 v5, 7, v29
              v_lshl_add_u32 v5, v23, 10, v5
              v_lshl_add_u32 v29, v29, 6, v6
              v_add_u32 v5, v5, v6
              v_and_b32 v6, 1, v26
              s_and_b32 s3, s28, 1
              v_xor_b32 v6, s3, v6
              v_lshlrev_b32 v6, 6, v6
              s_lshr_b32 s3, s28, 1
              s_lshl_b32 s3, s3, 12
              s_add_u32 s3, s3, {WB}
              v_add3_u32 v5, v5, v6, s3
              v_add_u32 v6, {3*WSL}, v5""")

    def ln_finish(su, sq):
        return L(f"""v_mul_f32 v164, 0x3b000000, {su}
                 v_mul_f32 v166, 0x3b000000, {sq}
                 v_fma_f32 v166, -v164, v164, v166
                 v_max_f32 v166, 0, v166
                 v_cvt_pk_bf16_f32 v167, v164, v166
                 v_lshlrev_b32 v164, 16, v167
                 v_and_b32 v166, s40, v167
                 v_add_f32 v166, 0x3727c5ac, v166
                 v_cvt_pk_bf16_f32 v166, v166, v166
                 v_and_b32 v166, s40, v166
                 v_sqrt_f32 v166, v166
                 v_cvt_pk_bf16_f32 v166, v166, v166
                 v_and_b32 v166, s40, v166
                 v_rcp_f32 v165, v166
                 v_mul_f32 v166, v164, v165""")
    def row_part(S, T, O):
        ops = []
        for i in range(4):
            ops += [f"v_lshlrev_b32 v{T+2*i}, 16, v{S+i}", f"v_and_b32 v{T+1+2*i}, s40, v{S+i}"]
        ops += [f"v_add_f32 v{O}, v{T}, v{T+1}", f"v_mul_f32 v{O+1}, v{T}, v{T}"]
        for i in range(1, 8): ops += [f"v_fmac_f32 v{O+1}, v{T+i}, v{T+i}"]
        for i in range(2, 8): ops += [f"v_add_f32 v{O}, v{O}, v{T+i}"]
        return ops
    def row_job2():
        ops = row_part(128, 136, 146) + row_part(132, 136, 148)
        ops += L("""v_permlane32_swap_b32 v146, v148
                    v_permlane32_swap_b32 v147, v149
                    v_add_f32 v146, v146, v148
                    v_add_f32 v147, v147, v149
                    v_mov_b32 v148, v146
                    v_mov_b32 v149, v147
                    v_permlane16_swap_b32 v146, v148
                    v_permlane16_swap_b32 v147, v149
                    v_add_f32 v146, v146, v148
                    v_add_f32 v147, v147, v149""")
        for r in (8, 4, 2, 1):
            ops += [f"v_add_f32_dpp v146, v146, v146 row_ror:{r} row_mask:0xf bank_mask:0xf",
                    f"v_add_f32_dpp v147, v147, v147 row_ror:{r} row_mask:0xf bank_mask:0xf"]
        ops += ln_finish("v146", "v147")
        return ops
    def col_sum4():
        ops = []
        for i in range(4):
            for hi in range(2):
                f = (lambda t, r: f"v_and_b32 v{t}, s40, v{r}") if hi else (lambda t, r: f"v_lshlrev_b32 v{t}, 16, v{r}")
                c = 156 + 2 * i + hi
                ops += [f(152, 136 + i), f(153, 140 + i), f(154, 144 + i), f(155, 148 + i),
                        f"v_add_f32 v{c}, v152, v153", "v_add_f32 v154, v154, v155", f"v_add_f32 v{c}, v{c}, v154"]
        return ops
    def col_red():
        return L("""v_permlane32_swap_b32 v156, v160
                    v_permlane32_swap_b32 v157, v161
                    v_permlane32_swap_b32 v158, v162
                    v_permlane32_swap_b32 v159, v163
                    v_add_f32 v156, v156, v160
                    v_add_f32 v157, v157, v161
                    v_add_f32 v158, v158, v162
                    v_add_f32 v159, v159, v163
                    v_permlane16_swap_b32 v156, v158
                    v_permlane16_swap_b32 v157, v159
                    v_add_f32 v156, v156, v158
                    v_add_f32 v157, v157, v159
                    v_add_f32_dpp v156, v156, v156 row_ror:8 row_mask:0xf bank_mask:0xf
                    v_add_f32_dpp v157, v157, v157 row_ror:8 row_mask:0xf bank_mask:0xf""")

    def rj_setup():
        return L(f"""s_lshl_b32 s76, s2, 3
                 s_lshl_b32 s3, s28, 1
                 s_add_u32 s76, s76, s3
                 s_lshl_b32 s77, s76, 4
                 s_add_u32 s77, s77, {RT_REL}
                 s_lshl_b32 s76, s76, 10
                 v_and_b32 v12, 1, v26
                 v_lshlrev_b32 v12, 10, v12
                 v_lshl_add_u32 v12, v27, 6, v12
                 v_lshl_add_u32 v12, v22, 4, v12""")
    def rj_prep():
        return [f"v_mov_b32 v{172+i}, 0x3f803f80" for i in range(4)] + L("""v_and_b32 v19, 3, v21
                 v_cmp_eq_u32 s[60:61], v19, v22
                 v_cmp_eq_u32 s[80:81], 1, v20
                 v_cmp_lt_u32 s[58:59], 1, v20
                 v_cmp_eq_u32 s[56:57], 3, v20
                 v_mov_b32 v19, 0x1000000
                 v_cmp_eq_u32 vcc, 0, v1
                 v_cndmask_b32 v13, v19, 0, vcc
                 v_cmp_eq_u32 vcc, 40, v1
                 v_cndmask_b32 v13, v13, 16, vcc""")
    def rj_mfma():
        return [f"{M16} v[136:139], {q4(172)}, {q4(128)}, 0", f"{M16} v[140:143], {q4(128)}, {q4(128)}, 0",
                f"{M16} v[136:139], {q4(172)}, {q4(132)}, v[136:139]", f"{M16} v[140:143], {q4(132)}, {q4(132)}, v[140:143]"]
    def rj_finish():
        dpp = lambda r, c: f"v_add_f32_dpp v{r}, v{r}, v{r} {c} row_mask:0xf bank_mask:0xf"
        o = L("""v_cndmask_b32 v140, v140, v141, s[80:81]
                 v_cndmask_b32 v142, v142, v143, s[56:57]""")
        o += [dpp(136, "quad_perm:[1,0,3,2]"), "v_cndmask_b32 v140, v140, v142, s[58:59]", dpp(136, "quad_perm:[2,3,0,1]"),
              "v_cndmask_b32 v140, 0, v140, s[60:61]", dpp(136, "row_half_mirror")]
        o += [dpp(140, f"row_ror:{r}") for r in (8, 4, 2, 1)]
        o += L("v_mov_b32 v141, v140\nv_permlane16_swap_b32 v140, v141\nv_add_f32 v140, v140, v141")
        o += ln_finish("v136", "v140")[:-1]
        return o

    def main(role):
        U = "F" + role
        vm = Cnt(a, "vmcnt", 63); lg = Cnt(a, "lgkmcnt", 15)
        T = {}
        tl = cfg.get("tl")
        Q = []
        stage_tok = {}
        hf = 0 if role == "A" else 1
        a("""s_lshl_b32 s3, s23, 6
             s_and_b32 s31, s28, 1
             s_lshl_b32 s31, s31, 4
             s_add_u32 s3, s3, s31
             v_add_u32 v31, s3, v26
             s_bitcmp1_b32 s28, 1
             s_cselect_b32 s3, -1, 0
             v_xor_b32 v31, s3, v31
             v_xor_b32 v8, v27, v22
             v_lshlrev_b32 v8, 4, v8""")
        for j in range(2):
            o = 32 * hf + 8 * j; r = 2 + j
            a(f"s_cselect_b32 s3, {2049 - o}, {o}\nv_add_u32 v{r}, s3, v31")
            if o == 0: a(f"v_mov_b32 v4, 0x400\nv_cmp_eq_u32 vcc, 0x800, v{r}\nv_cndmask_b32 v{r}, v{r}, v4, vcc")
            a(f"v_lshl_add_u32 v{r}, v{r}, 10, v8")
            if j: a(f"v_xor_b32 v{r}, 64, v{r}")
        a(f"""s_lshr_b32 s31, s28, 1
              s_lshl_b32 s31, s31, 7
              s_add_u32 s3, s83, s31
              s_and_b32 s31, s28, 1
              s_mul_i32 s31, s31, {16*stride}
              s_add_u32 s3, s3, s31
              v_mul_u32_u24 v4, {stride}, v26
              v_and_b32 v8, 1, v22
              v_lshlrev_b32 v8, 2, v8
              v_xor_b32 v8, v8, v27
              v_lshlrev_b32 v8, 4, v8
              v_add3_u32 v4, v4, v8, s3
              v_add_u32 v8, {8*stride}, v4""")
        a(f"s_lshl_b32 s25, s28, 11\ns_add_u32 s30, s25, {WB}")
        a(f"s_mov_b32 s50, {wsz}\ns_mov_b32 s51, 0x20000")
        cur = {"s37": None}
        ROT = cfg.get("rot1", 1)
        if ROT:
            a({1: "s_and_b32 s3, s21, 3\ns_lshl_b32 s3, s3, 1\ns_lshr_b32 s31, s21, 2\ns_add_u32 s3, s3, s31",
               2: "s_and_b32 s3, s21, 3\ns_lshl_b32 s3, s3, 1",
               3: "s_lshr_b32 s3, s21, 2\ns_lshl_b32 s3, s3, 2",
               4: "s_mov_b32 s3, s21"}[ROT])
            a(f"s_lshl_b32 s26, s3, 7\ns_mul_i32 s37, s3, {64*stride}")
        def xpart(J, j):
            def f():
                if ROT: pre = "s_add_u32 s26, s26, 128\ns_and_b32 s26, s26, 1023" if (J and j == 0) else "s_nop 0"
                else: pre = f"s_mov_b32 s26, {J*128}"
                a(f"s_add_u32 m0, s25, {(J % 3) * 16384 + hf * 8192 + j * 1024}\n{pre}\nbuffer_load_dwordx4 v{2 + j}, s[44:47], s26 offen lds")
                for n in (2 * J, 2 * J + 1): stage_tok[n] = vm.n + 1
                vm.issue()
            return f
        def wpart(n, hh):
            def f():
                a(f"s_add_u32 m0, s30, {(n % 6) * WSL + hf * 8192 + hh * 1024}")
                if cur["s37"] == n or (ROT and n == 0): a("s_nop 0")
                elif not ROT: a(f"s_mov_b32 s37, {n*32*stride}")
                elif n & 1: a(f"s_add_u32 s37, s37, {32*stride}")
                else: a(f"s_add_u32 s37, s37, {32*stride}\ns_cmp_eq_u32 s37, {512*stride}\ns_cselect_b32 s37, 0, s37")
                cur["s37"] = n
                a(f"buffer_load_dwordx4 v{(4, 8)[hh]}, s[48:51], s37 offen lds")
                stage_tok[n] = vm.issue()
            return f
        for n in range(16):
            if n % 2 == 0: Q += [("X", n // 2, xpart(n // 2, j)) for j in range(2)]
            Q += [("W", n, wpart(n, hh)) for hh in range(2)]
        def pump(k, passed):
            n = 0
            while n < k and Q:
                kind, i, f = Q[0]
                if kind == "W" and i > passed + 6: break
                if kind == "X" and 2 * i - 5 > passed: break
                Q.pop(0); f(); n += 1
            return n
        a("s_waitcnt lgkmcnt(0)")
        if stamp: a("s_memtime s[86:87]")
        a(f"s_mov_b32 s44, s4\ns_mov_b32 s45, s5\ns_mov_b32 s48, s{12+2*hf}\ns_mov_b32 s49, s{13+2*hf}")
        def job_dma():
            a(f"""s_lshr_b32 s3, s23, 2
                  s_lshl_b32 s3, s3, 2
                  s_add_u32 s3, s3, s28
                  s_mul_i32 s76, s3, {32*stride}
                  s_and_b32 s3, s23, 1
                  s_lshl_b32 s3, s3, 7
                  s_add_u32 s76, s76, s3
                  s_add_u32 s76, s76, s83
                  v_mul_u32_u24 v30, {stride}, v26
                  v_lshlrev_b32 v31, 1, v22
                  v_xor_b32 v31, v31, v27
                  v_lshl_add_u32 v30, v31, 4, v30
                  s_bitcmp1_b32 s23, 1
                  s_cselect_b32 s64, s14, s12
                  s_cselect_b32 s65, s15, s13
                  s_mov_b32 s66, {wsz}
                  s_mov_b32 s67, 0x20000
                  s_lshl_b32 s29, s28, 12
                  s_add_u32 s29, s29, {SCR}""")
            for t in range(4):
                a(f"s_add_u32 m0, s29, {t*1024}\ns_nop 0\nbuffer_load_dwordx4 v30, s[64:67], s76 offen lds\ns_add_u32 s76, s76, {8*stride}"); T["jc"] = vm.issue()
        JP = cfg.get("jp", 6); INIT = cfg.get("init", 10)
        pump(4, -1)
        setup_frag()
        pump(min(JP, INIT) - 4, -1)
        if role == "B": job_dma()
        else:
            for x in rj_setup(): a(x)
            a("buffer_load_dwordx4 v[128:131], v12, s[44:47], s76 offen"); vm.issue()
            a("buffer_load_dwordx4 v[132:135], v12, s[44:47], s76 offen offset:512"); T["jc"] = vm.issue()
        pump(INIT - min(JP, INIT), -1)
        if stamp and not tl: a("s_memtime s[88:89]")
        a("s_mov_b32 s18, s74\ns_mov_b32 s19, s75")
        srd(a, 52, 18, 19, H_SZ, H_OFF)
        srd(a, 68, 18, 19, FT_SZ, F_OFF)
        bg = []
        def run_bg(k):
            for _ in range(k):
                if not bg: return
                x = bg.pop(0)
                if callable(x): x()
                else: a(x)
        if role == "A":
            a(f"s_load_dwordx2 s[66:67], s[68:69], {EP_REL}")
            for x in rj_prep(): a(x)
            a("s_waitcnt lgkmcnt(0)\ns_add_u32 s66, s66, 1\ns_addc_u32 s67, s67, 0")
        if role == "B":
            a("s_mov_b32 s74, 256\ns_mov_b32 s75, 0x20000")
            a(f"""v_lshlrev_b32 v10, 2, v1
                  s_lshl_b32 s78, s24, 12
                  s_add_u32 s78, s78, {CT_REL}
                  s_and_b32 s3, s23, 3
                  s_lshl_b32 s3, s3, 2
                  s_add_u32 s3, s3, s28
                  s_lshl_b32 s3, s3, 8
                  s_lshr_b32 s79, s23, 2
                  s_lshl_b32 s79, s79, 2
                  s_add_u32 s79, s79, s3
                  s_add_u32 s79, s79, s78
                  v_mov_b32 v31, 0x1000000
                  v_cmp_gt_u32 vcc, 16, v1
                  v_cndmask_b32 v9, v31, v25, vcc
                  v_cmp_eq_u32 vcc, 0x100, v0
                  s_and_b32 s3, s2, 63
                  s_lshl_b32 s3, s3, 2
                  v_mov_b32 v11, s3
                  v_cndmask_b32 v11, v31, v11, vcc
                  v_mov_b32 v176, 1
                  v_and_b32 v18, 3, v26
                  v_xor_b32 v18, s28, v18
                  v_lshlrev_b32 v18, 5, v18
                  v_lshl_add_u32 v18, v21, 7, v18
                  v_lshl_add_u32 v18, v20, 3, v18
                  v_add_u32 v18, {SCR}, v18
                  s_lshl_b32 s3, s28, 10
                  v_add_u32 v13, s3, v25
                  s_lshl_b32 s3, s28, 8
                  s_add_u32 s3, s3, {CS}
                  v_add_u32 v169, s3, v10
                  v_lshrrev_b32 v7, 1, v1
                  s_lshl_b32 s3, s28, 5
                  v_add_u32 v7, s3, v7
                  v_and_b32 v31, 1, v1
                  v_lshlrev_b32 v168, 10, v31
                  v_lshl_add_u32 v168, v7, 2, v168
                  v_add_u32 v168, {FIN}, v168
                  v_mov_b32 v179, {STW}""")
            for i in range(4): a(f"v_mov_b32 v{172+i}, 0x3f803f80")
            a("""s_lshl_b32 s3, s23, 6
                 s_lshr_b32 s31, s28, 1
                 s_lshl_b32 s31, s31, 5
                 s_add_u32 s3, s3, s31
                 v_lshrrev_b32 v7, 1, v1
                 v_add_u32 v7, s3, v7
                 s_bitcmp1_b32 s28, 0
                 s_cselect_b32 s3, -1, 0
                 s_cselect_b32 s31, 0x801, 0
                 v_xor_b32 v7, s3, v7
                 v_add_u32 v7, s31, v7
                 v_mov_b32 v19, 0x400
                 v_cmp_eq_u32 vcc, 0x800, v7
                 v_cndmask_b32 v7, v7, v19, vcc
                 v_lshlrev_b32 v7, 4, v7
                 v_lshl_add_u32 v7, v31, 3, v7""")
            a("s_mul_i32 s32, s23, 14\ns_add_u32 s32, s32, s24\ns_lshr_b32 s33, s32, 1\ns_and_b32 s32, s32, 1\ns_lshl_b32 s32, s32, 2\ns_add_u32 s32, s32, s28")
            a("s_lshl_b32 s34, s33, 14\ns_lshl_b32 s3, s32, 7\ns_add_u32 s34, s34, s3\ns_add_u32 s36, s34, 64")
            a("v_lshlrev_b32 v28, 10, v21\nv_lshl_add_u32 v28, v20, 4, v28")
            a("s_mul_i32 s3, s32, 112\ns_add_u32 s3, s3, s33\ns_lshl_b32 s35, s3, 11")
            a(f"v_lshlrev_b32 v31, 8, v23\nv_add3_u32 v29, v29, v31, s29")
            srd(a, 56, 16, 17, 1835008)
            srd(a, 60, 18, 19, WT_SZ, WT_OFF)
        def frag_reads(st, ksl, R):
            xo = ((st // 2) % 3) * 16384; xa = 14 + 2 * (st & 1) + ksl
            sl = st % 6; wa = 5 + sl // 3; o = (sl % 3) * WSL + ksl * 2048
            t = {}
            a(f"ds_read_b128 v[{R}:{R+3}], v{xa} offset:{xo}"); lg.issue()
            a(f"ds_read_b64_tr_b16 v[{R+8}:{R+9}], v{wa} offset:{o}"); lg.issue()
            a(f"ds_read_b64_tr_b16 v[{R+10}:{R+11}], v{wa} offset:{o + 512}"); t[0] = lg.issue()
            a(f"ds_read_b64_tr_b16 v[{R+12}:{R+13}], v{wa} offset:{o + 8192}"); lg.issue()
            a(f"ds_read_b64_tr_b16 v[{R+14}:{R+15}], v{wa} offset:{o + 8192 + 512}"); t[1] = lg.issue()
            a(f"ds_read_b128 v[{R+4}:{R+7}], v{xa} offset:{xo + 4096}")
            t[2] = t[3] = lg.issue()
            return t
        def mfma(R, i, first):
            rt, p = i >> 1, i & 1
            ac = 64 + (rt * 2 + p) * 16
            x = f"v[{R+4*rt}:{R+4*rt+3}]"; w = f"v[{R+8+4*p}:{R+11+4*p}]"
            c = "0" if first else f"v[{ac}:{ac+15}]"
            a(f"v_mfma_f32_32x32x16_bf16 v[{ac}:{ac+15}], {w}, {x}, {c}")
        X, Y = 32, 48
        JR = cfg.get("jr", 1)
        WT_S = cfg.get("wts", 4); WT_R = cfg.get("wtr", 8); PCHK = POLL_S + cfg.get("pchk", 2)
        vm.wait(stage_tok[0])
        a("s_barrier")
        if stamp: a("s_memtime s[94:95]")
        if tl: a("s_memtime s[88:89]")
        xt = frag_reads(0, 0, X)
        rate = [int(c) for c in str(cfg.get("rate" + role, cfg.get("rate", "r22222222")))[1:]]
        dflt = {"A": (1, 2), "B": (2, 1)}[role]
        R_ = lambda hs: rate[hs] if hs < len(rate) else dflt[hs & 1] + cfg.get("rplus", 0)
        BGK = cfg.get("bgk", 4)
        for s in range(16):
            cur["s"] = s
            if role == "B":
                yt = frag_reads(s, 1, Y)
                if s == JR:
                    for u in range(8):
                        a(f"ds_read_b64_tr_b16 v[{136+2*u}:{137+2*u}], v18 offset:{u*2048}"); T["jr"] = lg.issue()
                if s == WT_R:
                    vm.wait(T["wt"])
                    for u in range(2):
                        a(f"ds_read_b64_tr_b16 v[{192+4*u}:{193+4*u}], v29 offset:{u*1024}"); lg.issue()
                        a(f"ds_read_b64_tr_b16 v[{194+4*u}:{195+4*u}], v29 offset:{u*1024+512}"); lg.issue()
            for i in range(4):
                lg.wait(xt[i])
                mfma(X, i, s == 0)
                if i == 0: left = R_(2 * s)
                if role == "A" and i == 0: yt = frag_reads(s, 1, Y)
                else:
                    k = (left + (3 - i)) // (4 - i)
                    left -= pump(k, s - 1) if k else 0
                if role == "A" and s == JR:
                    if i == 0: vm.wait(T["jc"])
                    a(rj_mfma()[i])
                run_bg(BGK)
            if role == "A" and s == JR:
                def row_store():
                    a("v_mov_b32 v166, s66\nv_mov_b32 v167, s67\nbuffer_store_dwordx4 v[164:167], v13, s[68:71], s77 offen sc1"); T["cs"] = vm.issue(); T["cs_s"] = cur["s"]
                bg += rj_finish() + [row_store]
            if role == "B":
                if s == 15:
                    a(f"v_cmp_ne_u32 vcc, 0, v177\ns_cbranch_vccnz K1_SLOW{U}")
                    vm.wait(T["tab"])
                    a("v_add_f32 v128, v128, v129\nv_add_f32 v130, v130, v131")
                    a("ds_write2_b32 v168, v164, v165 offset1:128"); lg.issue()
                    a("v_add_f32 v128, v128, v130")
                    a("ds_write_b32 v169, v128"); lg.issue()
                    a.label(f"K1_BACK{U}")
                if s == PCHK:
                    a(f"s_cmp_lg_u32 s20, 4\ns_cbranch_scc1 K1_NP{U}\ns_mov_b32 s85, 0")
                    a.label(f"K1_PL{U}")
                    a(f"""s_waitcnt vmcnt(0)
                          v_cmp_ne_u32 vcc, {3 + exp}, v177
                          v_mov_b32 v180, 0
                          s_cbranch_vccz K1_PW{U}
                          v_mov_b32 v180, 1
                          s_add_u32 s85, s85, 1
                          s_cmp_ge_u32 s85, {cfg.get("fbmax", 200)}
                          s_cbranch_scc1 K1_PW{U}
                          s_sleep 8
                          buffer_load_dword v177, v10, s[72:75], 0 offen sc1
                          s_branch K1_PL{U}""")
                    a.label(f"K1_PW{U}")
                    a("ds_write_b32 v179, v180\ns_waitcnt lgkmcnt(0)")
                    a.label(f"K1_NP{U}")
            vt = stage_tok.get(s + 1); ft = None
            if role == "B" and s == JR - 1: vt = max(vt or 0, T["jc"])
            if s == JR + cfg.get("fdelay", 3):
                assert T["cs_s"] < s if role == "A" else True
                ft = T["cs"]; vt = max(vt or 0, ft)
            if tl: a("s_memtime s[98:99]"); lg.issue()
            wait2(a, vm, vt, lg, lg.n)
            if tl: a(f"s_sub_u32 s98, s98, s90\nv_writelane_b32 v240, s98, {32+s}\ns_memtime s[98:99]\ns_waitcnt lgkmcnt(0)\ns_sub_u32 s98, s98, s90\nv_writelane_b32 v242, s98, {s}")
            if tl: a(f"s_sub_u32 s88, s88, s90\nv_writelane_b32 v240, s88, {s}")
            a("s_barrier")
            if tl: a("s_memtime s[88:89]")
            def nxt_reads():
                if s < 15: return frag_reads(s + 1, 0, X)
                epi_reads(lg)
            if role == "B":
                if s == PCHK:
                    a("ds_read_b32 v177, v179"); T["vd"] = lg.issue()
                    a(f"s_mov_b32 s3, {RT_REL}\nbuffer_load_dwordx2 v[164:165], v7, s[68:71], s3 offen sc1"); vm.issue()
                    a("buffer_load_dwordx4 v[128:131], v13, s[68:71], s78 offen sc1"); T["tab"] = vm.issue()
                xt = nxt_reads()
                if ft is not None:
                    a("buffer_atomic_add v176, v11, s[72:75], 0 offen sc1"); vm.issue()
                if s == POLL_S:
                    a(f"s_cmp_lg_u32 s20, 4\ns_cbranch_scc1 K1_NL{U}\nbuffer_load_dword v177, v10, s[72:75], 0 offen sc1")
                    a.label(f"K1_NL{U}")
                if s == WT_S:
                    a("s_mov_b32 m0, s29\ns_nop 0\nbuffer_load_dwordx4 v28, s[56:59], s34 offen lds"); vm.issue()
                    a("s_add_u32 m0, s29, 1024\ns_nop 0\nbuffer_load_dwordx4 v28, s[56:59], s36 offen lds"); T["wt"] = vm.issue()
                if s == WT_R:
                    a("buffer_store_dwordx4 v[192:195], v25, s[60:63], s35 offen" + ST1); vm.issue()
                    a("buffer_store_dwordx4 v[196:199], v25, s[60:63], s35 offen offset:1024" + ST1); vm.issue()
            for i in range(4):
                mfma(Y, i, False)
                if i == 0: left = R_(2 * s + 1)
                if not (role == "A" and i == 0):
                    k = (left + (3 - i)) // (4 - i)
                    left -= pump(k, s) if k else 0
                if role == "A" and i == 0: xt = nxt_reads()
                run_bg(BGK)
                if role == "B" and s == JR:
                    a(f"{M16} v[152:155], {q4(172)}, {q4(136+4*i)}, {'v[152:155]' if i else 0}")
            if role == "B" and s == JR: T["csd"] = 1
            if role == "B" and s == JR:
                a("buffer_store_dword v152, v9, s[68:71], s79 offen sc1"); T["cs"] = vm.issue()
        assert not Q and not bg
        if stamp: a("s_memtime s[96:97]")
        if tl:
            a("s_waitcnt lgkmcnt(0)\ns_sub_u32 s88, s88, s90\nv_writelane_b32 v240, s88, 16\ns_sub_u32 s88, s96, s90\nv_writelane_b32 v240, s88, 17")
            srd(a, 80, 18, 19, 0x100000, DBG_OFF + 0x10000)
            a("s_lshl_b32 s3, s2, 3\ns_add_u32 s3, s3, s20\ns_lshl_b32 s3, s3, 9\nv_lshlrev_b32 v241, 2, v1\nbuffer_store_dword v240, v241, s[80:83], s3 offen\nbuffer_store_dword v242, v241, s[80:83], s3 offen offset:256")
        def slow():
            a.label(f"K1_SLOW{U}")
            a("s_waitcnt vmcnt(0) ; hz:barrier")
            a(f"""v_lshlrev_b32 v168, 2, v23
                  s_lshl_b32 s3, s28, 7
                  s_add_u32 s3, s3, {FIN}
                  v_add_u32 v168, s3, v168
                  v_lshlrev_b32 v170, 5, v27
                  v_lshl_add_u32 v170, v22, 3, v170
                  s_lshl_b32 s3, s28, 8
                  s_add_u32 s3, s3, {CS}
                  v_add_u32 v170, s3, v170
                  s_mov_b32 s84, 0""")
            a.label(f"K1_SLOW{U}_R")
            a("""s_add_u32 s85, s84, 2 ; hz:barrier
                 v_readlane_b32 s76, v7, s84
                 v_readlane_b32 s77, v7, s85
                 s_lshl_b32 s76, s76, 6
                 s_lshl_b32 s77, s77, 6
                 buffer_load_dwordx4 v[128:131], v25, s[44:47], s76 offen
                 buffer_load_dwordx4 v[132:135], v25, s[44:47], s77 offen
                 s_waitcnt vmcnt(0)""")
            for x in row_job2(): a(x)
            a(f"ds_write2_b32 v168, v164, v165 offset1:128\nv_add_u32 v168, 8, v168\ns_add_u32 s84, s84, 4\ns_cmp_lt_u32 s84, 64\ns_cbranch_scc1 K1_SLOW{U}_R")
            a(f"""s_bitcmp1_b32 s28, 1
                  s_cselect_b32 s64, s14, s12
                  s_cselect_b32 s65, s15, s13
                  s_mov_b32 s66, {wsz}
                  s_mov_b32 s67, 0x20000
                  v_mul_u32_u24 v30, {stride}, v26
                  s_and_b32 s3, s28, 1
                  s_lshl_b32 s3, s3, 7
                  s_add_u32 s3, s3, s83
                  v_lshlrev_b32 v31, 4, v27
                  v_add3_u32 v30, v30, v31, s3
                  s_mov_b32 s76, 0""")
            for i in range(8): a(f"v_mov_b32 v{176+i}, 0")
            a.label(f"K1_SLOW{U}_C")
            a("s_nop 0 ; hz:barrier")
            for t in range(4):
                a(f"buffer_load_dwordx4 v[{136+4*t}:{139+4*t}], v30, s[64:67], s76 offen\ns_add_u32 s76, s76, {8*stride}")
            a("s_waitcnt vmcnt(0)")
            for x in col_sum4(): a(x)
            for i in range(8): a(f"v_add_f32 v{176+i}, v{176+i}, v{156+i}")
            a(f"s_cmp_lt_u32 s76, {512*stride}\ns_cbranch_scc1 K1_SLOW{U}_C")
            for i in range(8): a(f"v_mov_b32 v{156+i}, v{176+i}")
            for x in col_red(): a(x)
            a(f"ds_write_b64 v170, v[156:157]\ns_branch K1_BACK{U}")
        return slow

    def epi_reads(lg):
        a(f"s_lshl_b32 s3, s28, 7\ns_add_u32 s3, s3, {CS}\nv_lshl_add_u32 v164, v23, 4, s3")
        a(f"s_lshl_b32 s3, s27, 8\ns_add_u32 s3, s3, {FIN}\nv_lshl_add_u32 v165, v24, 2, s3")
        for rt in range(2):
            a(f"ds_read_b32 v{160+rt}, v165 offset:{rt*128}"); lg.issue()
            a(f"ds_read_b32 v{162+rt}, v165 offset:{512+rt*128}"); lg.issue()
        for p in range(2):
            for g in range(4):
                r = 128 + (p * 4 + g) * 4
                a(f"ds_read_b128 v[{r}:{r+3}], v164 offset:{p*512+g*32}"); lg.issue()

    def stamps_out():
        if not stamp: return
        stamp_store(a, 0, "K1_END")

    a("s_cmp_lg_u32 s27, 0\ns_cbranch_scc1 K1_FB")
    main("A")
    a.label("K1_FEPI")
    a("s_waitcnt lgkmcnt(0) ; hz:barrier\ns_nop 7\ns_nop 7")
    a(f"s_mov_b32 s41, {fbits(K0C)}\ns_mov_b32 s42, {fbits(K1C)}")
    for rt in range(2):
        r = 162 + rt; b = 32 + rt * 4
        a(f"""v_mul_f32 v{b+3}, v{r}, v{r}
              v_mul_f32 v{b}, s41, v{r}
              v_mul_f32 v{b+1}, s42, v{r}
              v_rcp_f32 v{b+2}, v{b+3}
              v_mul_f32 v{b+1}, v{b+1}, v{b+3}""")
    a("s_lshl_b32 s3, s23, 1\ns_add_u32 s3, s3, s27\ns_mul_i32 s3, s3, 112\ns_lshl_b32 s31, s24, 3\ns_add_u32 s3, s3, s31\ns_lshl_b32 s31, s28, 1\ns_add_u32 s3, s3, s31\ns_lshl_b32 s38, s3, 11")
    for rt in range(2):
        m = 160 + rt; b = 32 + rt * 4
        for j in range(2):
            T = 40 + 0
            ops = [[] for _ in range(9)]
            for e in range(0, 8, 2):
                idx = j * 8 + e
                ag = 64 + (rt * 2) * 16 + idx; au = ag + 16
                cg_ = 128 + idx; cu = 144 + idx
                tg, tu, z = T + e, T + 8 + e, T + 16 + e
                mo = f"op_sel:[{rt},0,0] op_sel_hi:[{rt},1,1] neg_lo:[1,0,0] neg_hi:[1,0,0]"
                seq = [[f"v_pk_fma_f32 {d2(tg)}, v[160:161], {d2(cg_)}, {d2(ag)} {mo}"],
                       [f"v_pk_fma_f32 {d2(tu)}, v[160:161], {d2(cu)}, {d2(au)} {mo}"],
                       [f"v_pk_mul_f32 {d2(z)}, {d2(tg)}, {d2(tg)}"],
                       [f"v_pk_fma_f32 {d2(z)}, {d2(z)}, {d2(b)}, {d2(b)} op_sel:[0,1,0] op_sel_hi:[1,1,0]"],
                       [f"v_pk_mul_f32 {d2(z)}, {d2(z)}, {d2(tg)}"],
                       [f"v_exp_f32 v{z}, v{z}", f"v_exp_f32 v{z+1}, v{z+1}"],
                       [f"v_pk_mul_f32 {d2(tu)}, {d2(tu)}, {d2(tg)}"],
                       [f"v_pk_fma_f32 {d2(z)}, {d2(z)}, {d2(b+2)}, {d2(b+2)} op_sel:[0,0,0] op_sel_hi:[1,0,0]"],
                       [f"v_rcp_f32 v{z}, v{z}", f"v_rcp_f32 v{z+1}, v{z+1}"]]
                for k_, s_ in enumerate(seq): ops[k_] += s_
            for k_ in range(9):
                for s_ in ops[k_]: a(s_)
            for e in range(0, 8, 2): a(f"v_pk_mul_f32 {d2(T+8+e)}, {d2(T+8+e)}, {d2(T+16+e)}")
            O = 164 + 4 * ((rt * 2 + j) & 1)
            for q in range(4): a(f"v_cvt_pk_bf16_f32 v{O+q}, v{T+8+2*q}, v{T+9+2*q}")
            a(f"buffer_store_dwordx4 v[{O}:{O+3}], v25, s[52:55], s38 offen offset:{j*2048+rt*1024}" + STH)
    stamps_out()
    a("s_endpgm")
    a.label("K1_FB")
    a("s_nop 4 ; hz:barrier")
    slowF = main("B")
    a("s_branch K1_FEPI")
    slowF()

    a.label("K1_FFT")
    a("s_lshl_b32 s29, s21, 2 ; hz:barrier\ns_add_u32 s29, s29, s22\nv_and_b32 v14, 15, v1")
    for x in rj_setup(): a(x)
    a("""s_waitcnt lgkmcnt(0)
         s_mov_b32 s44, s4
         s_mov_b32 s45, s5
         s_cmp_lg_u32 s27, 0
         s_cbranch_scc1 K1_X1
         buffer_load_dwordx4 v[128:131], v12, s[44:47], s76 offen
         buffer_load_dwordx4 v[132:135], v12, s[44:47], s76 offen offset:512""")
    a.label("K1_X1")
    a("s_mov_b32 s18, s74 ; hz:barrier\ns_mov_b32 s19, s75\ns_mov_b32 s74, 256\ns_mov_b32 s75, 0x20000")
    srd(a, 52, 18, 19, Z_SZ, Z_OFF)
    srd(a, 68, 18, 19, FT_SZ, F_OFF)
    a(f"s_load_dwordx2 s[66:67], s[68:69], {EP_REL}")
    FR, FI, TW, GC, GS, GN, GA, ONE, tmp = 96, 104, 112, 216, 220, 224, 232, 236, 200
    C = L(f"""s_lshl_b32 s3, s28, 4
              v_add_u32 v15, s3, v14
              v_cvt_f32_u32 v16, v15
              v_cvt_f32_u32 v17, v22
              v_cvt_f32_u32 v18, v14
              v_mul_f32 v16, 0x3c800000, v16
              v_mul_f32 v18, 0x3d000000, v18
              v_mul_f32 v19, v16, v17
              v_mul_f32 v19, 0x41000000, v19
              s_mov_b32 s41, 0x80008000
              v_and_b32 v5, 1, v15
              v_mul_lo_u32 v5, v5, s41
              v_and_b32 v6, 1, v1
              v_mul_lo_u32 v6, v6, s41""")
    C += [f"v_fmamk_f32 v{tmp+j}, v16, {fbits(float(j))}, v19" for j in range(8)]
    C += [f"v_fract_f32 v{tmp+j}, v{tmp+j}" for j in range(8)]
    C += [f"v_sin_f32 v{tmp+8+j}, v{tmp+j}" for j in range(8)]
    C += [f"v_cos_f32 v{tmp+j}, v{tmp+j}" for j in range(8)]
    C += [f"v_cvt_pk_bf16_f32 v{FI+i}, v{tmp+8+2*i}, v{tmp+9+2*i}" for i in range(4)]
    C += [f"v_cvt_pk_bf16_f32 v{FR+i}, v{tmp+2*i}, v{tmp+1+2*i}" for i in range(4)]
    C += [f"v_xor_b32 v{FI+i}, s41, v{FI+i}" for i in range(4)]
    for b in (FR, FI): C += [f"v_xor_b32 v{b+4+i}, v5, v{b+i}" for i in range(4)]
    n2s = [16 * (i >> 2) + (i & 3) for i in range(8)]
    C += L("v_mul_f32 v16, 0x3d000000, v16\nv_mul_f32 v19, v16, v17\nv_mul_f32 v19, 4.0, v19")
    C += [f"v_fmamk_f32 v{tmp+i}, v16, {fbits(float(n2s[i]))}, v19" for i in range(8)]
    C += [f"v_cos_f32 v{TW+i}, v{tmp+i}" for i in range(8)]
    C += [f"v_sin_f32 v{TW+8+i}, v{tmp+i}" for i in range(8)]
    C += L("v_mul_f32 v19, v18, v17\nv_mul_f32 v19, 4.0, v19")
    C += [f"v_fmamk_f32 v{tmp+i}, v18, {fbits(float(i))}, v19" for i in range(4)]
    C += [f"v_fract_f32 v{tmp+i}, v{tmp+i}" for i in range(4)]
    C += [f"v_sin_f32 v{tmp+4+i}, v{tmp+i}" for i in range(4)]
    C += [f"v_cos_f32 v{tmp+i}, v{tmp+i}" for i in range(4)]
    C += [f"v_cvt_pk_bf16_f32 v{GS+i}, v{tmp+4+2*i}, v{tmp+5+2*i}" for i in range(2)]
    C += [f"v_cvt_pk_bf16_f32 v{GC+i}, v{tmp+2*i}, v{tmp+1+2*i}" for i in range(2)]
    for b in (GC, GS): C += [f"v_xor_b32 v{b+2+i}, v6, v{b+i}" for i in range(2)]
    C += [f"v_xor_b32 v{GN+i}, s41, v{GS+i}" for i in range(4)]
    C += [f"v_mov_b32 v{GA+i}, 0xbf803f80" for i in range(4)]
    C += L(f"""v_lshrrev_b32 v2, 1, v1
               v_and_b32 v3, 1, v1
               v_lshlrev_b32 v4, 10, v2
               v_lshl_add_u32 v4, v3, 4, v4
               s_lshl_b32 s25, s20, 18
               s_lshl_b32 s3, s29, 5
               s_add_u32 s25, s25, s3
               v_lshlrev_b32 v5, 4, v2
               s_lshl_b32 s78, s20, 12
               s_add_u32 s78, s78, {RT_REL}
               v_lshrrev_b32 v6, 4, v2
               v_lshlrev_b32 v6, 11, v6
               v_and_b32 v7, 15, v2
               v_lshl_add_u32 v6, v7, 4, v6
               v_mul_u32_u24 v7, {8*4096+64}, v3
               s_lshl_b32 s3, s27, 10
               s_lshl_b32 s31, s28, 8
               s_add_u32 s3, s3, s31
               v_add3_u32 v6, v6, v7, s3
               s_mul_i32 s3, s27, {8*4096+64}
               v_add_u32 v7, s3, v25
               v_lshlrev_b32 v8, 19, v22
               v_lshl_add_u32 v8, v14, 4, v8
               s_lshr_b32 s38, s28, 1
               s_lshl_b32 s38, s38, 16
               s_lshl_b32 s3, s29, 11
               s_add_u32 s38, s38, s3
               s_lshl_b32 s3, s27, 9
               s_add_u32 s38, s38, s3
               s_and_b32 s3, s28, 1
               s_lshl_b32 s3, s3, 8
               s_add_u32 s38, s38, s3
               s_cmp_eq_u32 s28, 0
               s_cselect_b32 s64, 1, 0
               s_mov_b32 s65, 0
               v_mov_b32 v31, 0x1000000
               v_mov_b32 v30, 1
               v_cmp_eq_u32 vcc, 0, v0
               s_lshl_b32 s3, s2, 2
               v_mov_b32 v11, s3
               v_cndmask_b32 v11, v31, v11, vcc
               v_cndmask_b32 v24, v31, 0, vcc""")
    def slab():
        for j in range(8):
            a(f"buffer_load_dwordx4 {q4(64+4*j)}, v4, s[44:47], s25 offen")
            if j < 7: a("s_add_u32 s25, s25, 0x8000")
    SL = C[C.index("v_lshrrev_b32 v2, 1, v1"):C.index("v_lshlrev_b32 v5, 4, v2")]
    C = [x for i, x in enumerate(C) if not (C.index("v_lshrrev_b32 v2, 1, v1") <= i < C.index("v_lshlrev_b32 v5, 4, v2"))]
    for x in SL: a(x)
    a("s_cmp_eq_u32 s27, 0\ns_cbranch_scc1 K1_XR")
    slab()
    for x in C: a(x)
    a(f"s_waitcnt lgkmcnt(0)\ns_add_u32 s66, s66, {exp}\ns_addc_u32 s67, s67, 0")
    a("s_barrier\ns_barrier\ns_branch K1_XC")
    a.label("K1_XR")
    a("s_nop 0 ; hz:barrier")
    for x in rj_prep(): a(x)
    a("s_waitcnt vmcnt(0)")
    for x in rj_mfma() + rj_finish(): a(x)
    a("s_waitcnt lgkmcnt(0)\ns_add_u32 s66, s66, 1\ns_addc_u32 s67, s67, 0\nv_mov_b32 v166, s66\nv_mov_b32 v167, s67")
    if cfg.get("force_fb"): a("s_add_u32 s66, s66, 1")
    a("s_barrier")
    a("buffer_store_dwordx4 v[164:167], v13, s[68:71], s77 offen sc1")
    if stamp: a("s_memtime s[86:87]")
    slab()
    for x in C: a(x)
    a("s_waitcnt vmcnt(8)\ns_barrier")
    a("buffer_atomic_add v30, v11, s[72:75], 0 offen sc1")
    a.label("K1_XC")
    XU = 128; RM = 32
    def poll(tag, bound, out):
        a("s_movk_i32 s82, 0xff\ns_mov_b32 s83, 0")
        a.label(f"K1_{tag}P")
        a("s_nop 0 ; hz:barrier")
        for j in range(8):
            a(f"s_bitcmp1_b32 s82, {j}\ns_cbranch_scc0 K1_{tag}P{j}\nbuffer_load_dwordx4 {q4(RM+4*j)}, v5, s[68:71], s78 offen offset:{j*512} sc1")
            a.label(f"K1_{tag}P{j}")
        if tag == "X":
            a(f"s_cmp_lg_u32 s83, 0\ns_cbranch_scc1 K1_XU\ns_waitcnt vmcnt(8)")
            if stamp: a("s_memtime s[84:85]")
            for j in range(8):
                for i in range(4):
                    a(f"v_lshlrev_b32 v{XU+8*j+2*i}, 16, v{64+4*j+i}\nv_and_b32 v{XU+8*j+2*i+1}, s40, v{64+4*j+i}")
            a.label("K1_XU")
        a("s_waitcnt vmcnt(0)\ns_mov_b32 s82, 0")
        for j in range(8):
            a(f"""v_cmp_ne_u64 vcc, s[66:67], {d2(RM+4*j+2)}
                  s_cmp_lg_u64 vcc, 0
                  s_cselect_b32 s3, {1 << j}, 0
                  s_or_b32 s82, s82, s3""")
        a(f"s_cbranch_scc0 {out}\ns_add_u32 s83, s83, 1")
        if bound: a(f"s_cmp_ge_u32 s83, {bound}\ns_cbranch_scc1 K1_XSLOW")
        a(f"s_sleep {cfg.get('xsleep', 8)}\ns_branch K1_{tag}P")
    a("s_mov_b32 s39, 0 ; hz:barrier")
    poll("X", cfg.get("fbmax2", 300), "K1_XBACK")
    a.label("K1_XBACK")
    a("s_nop 0 ; hz:barrier")
    if stamp: a("s_memtime s[88:89]")
    for j in range(8): a(f"v_mul_f32 v{RM+4*j}, v{RM+4*j}, v{RM+4*j+1}")
    for jp in range(4):
        for j in (2 * jp, 2 * jp + 1):
            for i in range(4):
                x = XU + 8 * j + 2 * i
                a(f"v_pk_fma_f32 {d2(x)}, {d2(x)}, {d2(RM+4*j)}, {d2(RM+4*j)} op_sel:[0,1,0] op_sel_hi:[1,1,0] neg_lo:[0,0,1] neg_hi:[0,0,1]")
        for dd in range(8):
            a(f"v_cvt_pk_bf16_f32 v{64+4*dd+jp}, v{XU+16*jp+dd}, v{XU+16*jp+8+dd}")
    for dd in range(8): a(f"ds_write_b128 v6, {q4(64+4*dd)} offset:{dd*4096}")
    a("s_waitcnt lgkmcnt(0)\ns_barrier")
    if stamp: a("s_memtime s[94:95]")
    lg = Cnt(a, "lgkmcnt", 15)
    AF = [64, 80]; YS = [168, 184]; PR, PI = 152, 156; XO = [128, 140]; OR_, OI_ = 32, 48
    rtok = {}
    def rd(c):
        for f in range(4):
            a(f"ds_read_b128 {q4(AF[c&1]+4*f)}, v7 offset:{c*4096+f*1024}"); rtok[(c, f)] = lg.issue()
    def s1(c):
        o = []
        for ks in range(2):
            for tile in range(2):
                f = tile * 2 + ks
                for B, yo in ((FR, 0), (FI, 8)):
                    y = YS[c & 1] + yo + 4 * tile
                    o.append((rtok[(c, f)], f"{M16} {q4(y)}, {q4(AF[c&1]+4*f)}, {q4(B+4*ks)}, {'0' if ks == 0 else q4(y)}"))
        return o
    def tw(c):
        YR, YI = YS[c & 1], YS[c & 1] + 8
        o = [f"v_mul_f32 v{tmp+i}, v{YR+i}, v{TW+i}" for i in range(8)]
        o += [f"v_mul_f32 v{tmp+8+i}, v{YI+i}, v{TW+i}" for i in range(8)]
        o += [f"v_fmac_f32 v{tmp+i}, v{YI+i}, v{TW+8+i}" for i in range(8)]
        o += [f"v_fma_f32 v{tmp+8+i}, -v{YR+i}, v{TW+8+i}, v{tmp+8+i}" for i in range(8)]
        o += [f"v_cvt_pk_bf16_f32 v{PR+i}, v{tmp+2*i}, v{tmp+1+2*i}" for i in range(4)]
        o += [f"v_cvt_pk_bf16_f32 v{PI+i}, v{tmp+8+2*i}, v{tmp+9+2*i}" for i in range(4)]
        return o
    def s2(c):
        X = XO[c & 1]
        return [f"{M16} {q4(X)}, {q4(GC)}, {q4(PR)}, 0", f"{M16} {q4(X+4)}, {q4(GN)}, {q4(PR)}, 0", f"{M16} {q4(X+8)}, {q4(GA)}, {q4(PR)}, 0",
                f"{M16} {q4(X)}, {q4(GS)}, {q4(PI)}, {q4(X)}", f"{M16} {q4(X+4)}, {q4(GC)}, {q4(PI)}, {q4(X+4)}"]
    def pack(c):
        o = [f"v_cndmask_b32 v{XO[k]+4}, v{XO[k]+4}, v{XO[k]+8}, s[64:65]" for k in range(2)]
        for r in range(4):
            o += [f"v_cvt_pk_bf16_f32 v{OR_+4*r+c//2}, v{XO[0]+r}, v{XO[1]+r}", f"v_cvt_pk_bf16_f32 v{OI_+4*r+c//2}, v{XO[0]+4+r}, v{XO[1]+4+r}"]
        return o
    rd(0); rd(1)
    for tok, m in s1(0): lg.wait(tok); a(m)
    pend = []
    for c in range(8):
        fill = pend + tw(c); pend = []
        if c < 7:
            ms = s1(c + 1); n = len(ms); p = 0
            for i, (tok, m) in enumerate(ms):
                lg.wait(tok); a(m)
                qn = (len(fill) * (i + 1)) // n
                while p < qn: a(fill[p]); p += 1
            if c + 2 < 8: rd(c + 2)
        else:
            for x in fill: a(x)
        for m in s2(c): a(m)
        if c & 1: pend = pack(c)
    for x in pend: a(x)
    if stamp: a("s_memtime s[96:97]")
    for r in range(4):
        a(f"buffer_store_dwordx4 {q4(OR_+4*r)}, v8, s[52:55], s38 offen" + STF)
        a(f"buffer_store_dwordx4 {q4(OI_+4*r)}, v8, s[52:55], s38 offen offset:1024" + STF)
        if r < 3: a("s_add_u32 s38, s38, 0x20000")
    a("s_cmp_eq_u32 s29, 0\ns_cbranch_scc1 K1_XE")
    a.label("K1_XDONE")
    stamps_out()
    a("s_endpgm")
    a.label("K1_XE")
    if cfg.get("force_fb"): a("s_sub_u32 s66, s66, 1 ; hz:barrier")
    a("s_cmp_eq_u32 s39, 0 ; hz:barrier\ns_cbranch_scc1 K1_XE2\ns_waitcnt vmcnt(0)")
    poll("E", 0, "K1_XE2")
    a.label("K1_XE2")
    a(f"""s_barrier ; hz:barrier
          v_mov_b32 v2, s66
          v_mov_b32 v3, s67
          buffer_store_dwordx2 v[2:3], v24, s[68:71], 0 offen offset:{EP_REL} sc1
          s_branch K1_XDONE""")
    a.label("K1_XSLOW")
    XT = 0x11000
    a(f"""s_mov_b32 s39, 1 ; hz:barrier
          s_lshl_b32 s76, s20, 18
          s_lshl_b32 s3, s20, 12
          s_add_u32 s3, s3, {XT}
          v_lshrrev_b32 v13, 5, v1
          v_lshlrev_b32 v13, 4, v13
          v_add_u32 v13, s3, v13
          v_add_u32 v12, s3, v5
          s_mov_b32 s84, 0""")
    for i in range(40): a(f"v_mov_b32 v{32+i}, v{128+i}")
    a.label("K1_XSLOW_R")
    a("""buffer_load_dwordx4 v[128:131], v25, s[44:47], s76 offen ; hz:barrier
         buffer_load_dwordx4 v[132:135], v25, s[44:47], s76 offen offset:1024
         s_waitcnt vmcnt(0)""")
    for x in row_job2(): a(x)
    a("""ds_write_b128 v13, v[164:167]
         v_add_u32 v13, 32, v13
         s_add_u32 s76, s76, 2048
         s_add_u32 s84, s84, 1
         s_cmp_lt_u32 s84, 128
         s_cbranch_scc1 K1_XSLOW_R
         s_waitcnt lgkmcnt(0)""")
    for i in range(40): a(f"v_mov_b32 v{128+i}, v{32+i}")
    for j in range(8): a(f"ds_read_b64 v[{RM+4*j}:{RM+4*j+1}], v12 offset:{j*512}")
    a("s_waitcnt lgkmcnt(0)\ns_branch K1_XBACK")
    a.label("K1_END")
    lines, n = hz.fix(a.l)
    return "\n".join(lines), 244

PL2 = 64 * 272
K2_LDS = 8 * PL2
def gen_k2(cfg):
    a = Asm()
    stamp = cfg.get("stamp", False)
    D = cfg.get("depth", 8); NR = 11; BK = cfg.get("bk", 18)
    L = lambda txt: [x.strip() for x in txt.split("\n") if x.strip()]
    q4 = lambda r: f"v[{r}:{r+3}]"
    M32 = "v_mfma_f32_32x32x16_bf16"
    a("s_cmp_ge_u32 s2, 256\ns_cbranch_scc1 K2_END")
    a("s_load_dwordx2 s[18:19], s[0:1], 88\ns_load_dwordx2 s[4:5], s[0:1], 0\ns_load_dwordx2 s[6:7], s[0:1], 72")
    if stamp: a("s_memtime s[90:91]\ns_memrealtime s[92:93]\ns_mov_b64 s[86:87], 0\ns_mov_b64 s[88:89], 0\ns_mov_b64 s[94:95], 0\ns_mov_b64 s[96:97], 0")
    a("v_lshrrev_b32 v2, 6, v0\nv_and_b32 v1, 63, v0\nv_lshlrev_b32 v3, 4, v1\nv_readfirstlane_b32 s20, v2")
    a("s_and_b32 s21, s2, 7\ns_lshr_b32 s22, s2, 3\ns_lshl_b32 s23, s21, 2\ns_lshr_b32 s3, s22, 3\ns_add_u32 s23, s23, s3\ns_and_b32 s24, s22, 7")
    a("s_cmp_ge_u32 s20, 4\ns_cbranch_scc1 K2_S")
    PLW = f"""v_and_b32 v15, 31, v1
         v_lshrrev_b32 v16, 5, v1
         v_mul_u32_u24 v5, 272, v15
         v_lshl_add_u32 v5, v16, 4, v5
         s_mul_i32 s35, s20, {PL2}
         v_add_u32 v5, s35, v5"""
    def stamps():
        if stamp:
            a("s_and_b32 s3, s20, 3\ns_cmp_lg_u32 s3, 0\ns_cbranch_scc1 K2_END\ns_lshr_b32 s31, s20, 2\ns_mov_b32 s20, 0\ns_lshl_b32 s31, s31, 8\ns_add_u32 s2, s2, s31")
            stamp_store(a, 1, "K2_END")
    vm = Cnt(a, "vmcnt", 63)
    a("s_mul_i32 s3, s20, 28\ns_mul_i32 s25, s23, 112\ns_add_u32 s25, s25, s3\ns_lshl_b32 s25, s25, 11\ns_mul_i32 s26, s24, 112\ns_add_u32 s26, s26, s3\ns_lshl_b32 s26, s26, 11")
    a(f"s_mov_b32 s46, {H_SZ}\ns_mov_b32 s47, 0x20000\ns_mov_b32 s50, {WT_SZ}\ns_mov_b32 s51, 0x20000")
    if cfg.get("gprio"): a(f"s_setprio {cfg['gprio']}")
    a("s_waitcnt lgkmcnt(0)")
    a(f"s_mov_b32 s44, s18\ns_mov_b32 s45, s19\ns_add_u32 s48, s18, {WT_OFF}\ns_addc_u32 s49, s19, 0")
    ktok = {}; LQ = []
    RB = 80
    for ks in range(28):
        r = RB + (ks % NR) * 16; o = (ks & 1) * 2048
        for i, (rr, sd, so, oo) in enumerate(((r, 48, 26, o), (r + 8, 44, 25, o), (r + 4, 48, 26, o + 1024), (r + 12, 44, 25, o + 1024))):
            pre = "s_add_u32 s25, s25, 4096\ns_add_u32 s26, s26, 4096\n" if (i == 0 and ks and not (ks & 1)) else ""
            LQ.append((ks, i, pre + f"buffer_load_dwordx4 {q4(rr)}, v3, s[{sd}:{sd+3}], s{so} offen offset:{oo}"))
    st = {"cons": -1}
    def load1(limit):
        if not LQ: return False
        ks, i, t = LQ[0]
        if ks > st["cons"] + NR or ks > limit: return False
        LQ.pop(0); a(t); tok = vm.issue()
        if i == 3: ktok[ks] = tok
        return True
    while load1(D - 1): pass
    for x in L(PLW): a(x)
    AC = [16, 32, 48, 64]
    for ks in range(28):
        vm.wait(ktok[ks])
        if stamp and ks == 0: a("s_memtime s[94:95]")
        r = RB + (ks % NR) * 16
        for et in range(2):
            for tt in range(2):
                ac = AC[et * 2 + tt]
                c = "0" if ks == 0 else f"v[{ac}:{ac+15}]"
                a(f"{M32} v[{ac}:{ac+15}], {q4(r+4*et)}, {q4(r+8+4*tt)}, {c}")
                n = 0
                while n < 2 and load1(ks + D): n += 1
        st["cons"] = ks
        if ks == BK: a("s_barrier")
    if stamp: a("s_memtime s[96:97]")
    for ti in range(4):
        et, tt = ti >> 1, ti & 1
        for g in range(4):
            a(f"ds_write_b128 v5, {q4(AC[ti]+4*g)} offset:{tt*32*272 + et*128 + g*32}")
    a("s_waitcnt lgkmcnt(0)\ns_barrier")
    stamps()
    a("s_endpgm")
    a.label("K2_S")
    a(f"s_setprio {cfg.get('fprio', 3)} ; hz:barrier")
    a(f"""s_sub_u32 s29, s20, 4
          s_lshl_b32 s27, s23, 16
          s_lshl_b32 s3, s29, 14
          s_add_u32 s27, s27, s3
          s_mov_b32 s54, {Z_SZ}
          s_mov_b32 s55, 0x20000
          s_waitcnt lgkmcnt(0)
          s_add_u32 s52, s18, {Z_OFF}
          s_addc_u32 s53, s19, 0""")
    FB = 128
    for i in range(16):
        if i and i % 4 == 0: a("s_add_u32 s27, s27, 4096")
        a(f"buffer_load_dwordx4 {q4(FB+4*i)}, v3, s[52:55], s27 offen offset:{(i % 4)*1024}")
    srd(a, 64, 4, 5, 0x200000); srd(a, 68, 6, 7, 0x200000)
    a(f"""v_lshrrev_b32 v12, 2, v1
          v_and_b32 v13, 3, v1
          s_lshl_b32 s3, s23, 5
          s_and_b32 s31, s29, 1
          s_lshl_b32 s31, s31, 4
          s_add_u32 s3, s3, s31
          v_add_u32 v4, s3, v12
          s_bitcmp1_b32 s29, 1
          s_cselect_b32 s3, -1, 0
          s_cselect_b32 s31, 0x801, 0
          v_xor_b32 v4, s3, v4
          v_add_u32 v4, s31, v4
          v_mov_b32 v6, 0x400
          v_cmp_eq_u32 vcc, 0x800, v4
          v_cndmask_b32 v4, v4, v6, vcc
          v_lshlrev_b32 v4, 10, v4
          v_lshl_add_u32 v4, v13, 5, v4
          s_lshl_b32 s32, s24, 7
          buffer_load_dwordx4 v[192:195], v4, s[64:67], s32 offen
          buffer_load_dwordx4 v[196:199], v4, s[64:67], s32 offen offset:16
          s_setprio 0
          s_lshl_b32 s3, s29, 4
          v_add_u32 v6, s3, v12
          v_mul_u32_u24 v6, 272, v6
          v_lshl_add_u32 v6, v13, 6, v6
          v_add_u32 v7, {2*PL2}, v6
          v_add_u32 v8, {4*PL2}, v6
          v_add_u32 v9, {6*PL2}, v6""")
    for x in L(PLW): a(x)
    a("""s_lshl_b32 s3, s24, 6
         v_add_u32 v10, s3, v15
         v_add_u32 v11, 32, v10
         v_cvt_f32_u32 v10, v10
         v_cvt_f32_u32 v11, v11
         s_lshl_b32 s3, s29, 7
         v_lshl_add_u32 v14, v16, 3, s3
         v_cvt_f32_u32 v14, v14
         v_mul_f32 v10, 0x3b000000, v10
         v_mul_f32 v11, 0x3b000000, v11
         v_mul_f32 v12, v10, v14
         v_mul_f32 v13, v11, v14
         v_fract_f32 v12, v12
         v_fract_f32 v13, v13
         s_cmp_eq_u32 s23, 0
         s_cselect_b32 s30, 1, 0
         s_mov_b32 s31, s30""")
    P, Q, R = [16, 32], [48, 64], [80, 96]
    TC = [200, 224]
    n = 0
    for ks in range(8):
        for et in range(2):
            t = TC[n & 1]; n += 1
            for j in range(8): a(f"v_fmamk_f32 v{t+j}, v{10+et}, {fbits(float(16*ks+j))}, v{12+et}")
            if cfg.get("fract", 0):
                for j in range(8): a(f"v_fract_f32 v{t+j}, v{t+j}")
            for j in range(8): a(f"v_sin_f32 v{t+8+j}, v{t+j}")
            for j in range(8): a(f"v_cos_f32 v{t+j}, v{t+j}")
            for i in range(4): a(f"v_cvt_pk_bf16_f32 v{t+20+i}, v{t+8+2*i}, v{t+9+2*i}")
            for i in range(4): a(f"v_cvt_pk_bf16_f32 v{t+16+i}, v{t+2*i}, v{t+1+2*i}")
            if et == 0: a(f"s_waitcnt vmcnt({2 + 14 - 2*ks})")
            acc = lambda r: "0" if ks == 0 else f"v[{r}:{r+15}]"
            a(f"{M32} v[{Q[et]}:{Q[et]+15}], {q4(t+20)}, {q4(FB+8*ks+4)}, {acc(Q[et])}")
            a(f"{M32} v[{P[et]}:{P[et]+15}], {q4(t+16)}, {q4(FB+8*ks)}, {acc(P[et])}")
            a(f"s_cbranch_scc0 K2_NR{n}")
            a(f"{M32} v[{R[et]}:{R[et]+15}], {q4(t+16)}, {q4(FB+8*ks+4)}, {acc(R[et])}")
            a.label(f"K2_NR{n}")
    if stamp: a("s_memtime s[94:95]")
    a("s_nop 7\ns_nop 7")
    for et in range(2):
        for i in range(16):
            a(f"v_cndmask_b32 v{Q[et]+i}, v{Q[et]+i}, 0, s[30:31]")
            a(f"v_cndmask_b32 v{R[et]+i}, v{P[et]+i}, v{R[et]+i}, s[30:31]")
        for i in range(16):
            a(f"v_add_f32 v{P[et]+i}, v{P[et]+i}, v{Q[et]+i}")
            a(f"v_sub_f32 v{R[et]+i}, v{R[et]+i}, v{Q[et]+i}")
        for tt, b in ((0, P[et]), (1, R[et])):
            for g in range(4):
                a(f"ds_write_b128 v5, {q4(b+4*g)} offset:{tt*32*272 + et*128 + g*32}")
    a("s_waitcnt lgkmcnt(0)\ns_barrier")
    if stamp: a("s_memtime s[86:87]")
    lg = Cnt(a, "lgkmcnt", 15)
    S = 16
    def red(base, first):
        tok = []
        for p in range(4):
            for q in range(4):
                a(f"ds_read_b128 {q4(32+(p*4+q)*4)}, v{base + (p >> 1)} offset:{(p & 1)*PL2 + q*16}"); tok.append(lg.issue())
                if lg.n - lg.done > 15: raise Exception("lgkm overflow")
            if p == 2 or p == 3: pass
        return tok
    a("s_waitcnt vmcnt(0)")
    for i in range(8): a(f"v_lshlrev_b32 v{S+2*i}, 16, v{192+i}\nv_and_b32 v{S+1+2*i}, 0xffff0000, v{192+i}")
    def reduce4(base):
        toks = []
        for p in range(4):
            for q in range(4):
                if lg.n - lg.done >= 15: lg.wait(lg.n - 11)
                a(f"ds_read_b128 {q4(32+(p*4+q)*4)}, v{base + (p >> 1)} offset:{(p & 1)*PL2 + q*16}"); toks.append(lg.issue())
        d2 = lambda r: f"v[{r}:{r+1}]"
        lg.wait(toks[7])
        for i in range(0, 16, 2): a(f"v_pk_add_f32 {d2(32+i)}, {d2(32+i)}, {d2(48+i)}")
        for i in range(0, 16, 2): a(f"v_pk_add_f32 {d2(S+i)}, {d2(S+i)}, {d2(32+i)}")
        lg.wait(toks[15])
        for i in range(0, 16, 2): a(f"v_pk_add_f32 {d2(64+i)}, {d2(64+i)}, {d2(80+i)}")
        for i in range(0, 16, 2): a(f"v_pk_add_f32 {d2(S+i)}, {d2(S+i)}, {d2(64+i)}")
    reduce4(8)
    if stamp: a("s_memtime s[88:89]")
    a("s_barrier")
    if stamp: a("s_memtime s[96:97]")
    reduce4(6)
    for i in range(8): a(f"v_cvt_pk_bf16_f32 v{96+i}, v{S+2*i}, v{S+1+2*i}")
    a("buffer_store_dwordx4 v[96:99], v4, s[68:71], s32 offen\nbuffer_store_dwordx4 v[100:103], v4, s[68:71], s32 offen offset:16")
    stamps()
    a.label("K2_END")
    lines, n = hz.fix(a.l)
    return "\n".join(lines), 256

HEADER = open("parallel_sum__spectral_fnet__geglu_ffn__prompt.s.ref").read().split("; Override launch")[0]

def build(cfg):
    k1, v1 = gen_k1(cfg)
    k2, v2 = gen_k2(cfg)
    out = HEADER
    out += f"; @launch kernel=fnet_g1_kernel grid=(256,1,1) block=(512,1,1) lds={K1_LDS}\n"
    out += f"; @launch kernel=fnet_g2_kernel grid=(256,1,1) block=(512,1,1) lds={K2_LDS}\n"
    out += HDR + kern("fnet_g1_kernel", k1) + kern("fnet_g2_kernel", k2)
    out += '.section .rodata,"a"\n' + kd("fnet_g1_kernel", v1, 102, 244) + kd("fnet_g2_kernel", v2, 102, 256)
    return out

if __name__ == "__main__":
    cfg = {}
    for kv in sys.argv[2:]:
        k, v = kv.split("=")
        cfg[k] = int(v) if v.lstrip("-").isdigit() else v
    open(sys.argv[1], "w").write(build(cfg))
```

```python
import sys, math
from asmlib import Asm, kd, kern, HDR
import hz

H_OFF, H_SZ = 0x0, 32 * 112 * 2 * 1024
WT_OFF, WT_SZ = 0x800000, 8 * 112 * 2 * 1024
Z_OFF, Z_SZ = 0xA00000, 256 * 2 * 4096
Y_OFF, Y_SZ = 0xC00000, 257 * 8192
F_OFF, F_SZ = 0xF00000, 257 * 16
RT_REL, CT_REL, FT_SZ = 0x10000, 0x20000, 0x30000
DBG_OFF = 0x1000000

class Cnt:
    def __init__(self, a, name, cap):
        self.a, self.name, self.cap = a, name, cap
        self.n = 0
        self.done = 0
    def issue(self):
        self.n += 1
        return self.n
    def need(self, tok):
        if tok is None or tok <= self.done: return None
        return self.n - tok
    def wait(self, tok):
        k = self.need(tok)
        if k is None: return
        k = min(k, self.cap)
        self.a(f"s_waitcnt {self.name}({k})")
        self.done = max(self.done, self.n - k)
    def mark(self, tok):
        if tok is not None: self.done = max(self.done, tok)

def wait2(a, vm, vt, lg, lt):
    parts = []
    k = vm.need(vt)
    if k is not None:
        k = min(k, vm.cap); parts.append(f"vmcnt({k})"); vm.done = max(vm.done, vm.n - k)
    k = lg.need(lt)
    if k is not None:
        k = min(k, lg.cap); parts.append(f"lgkmcnt({k})"); lg.done = max(lg.done, lg.n - k)
    if parts: a("s_waitcnt " + " ".join(parts))

def interleave(a, main, fill):
    n = len(main); f = len(fill); p = 0
    for i, m in enumerate(main):
        a(m)
        q = (f * (i + 1)) // n
        while p < q:
            a(fill[p]); p += 1

def srd(a, d, lo, hi, size, off=0):
    if off:
        a(f"s_add_u32 s{d}, s{lo}, {off}\ns_addc_u32 s{d+1}, s{hi}, 0")
    else:
        a(f"s_mov_b32 s{d}, s{lo}\ns_mov_b32 s{d+1}, s{hi}")
    a(f"s_mov_b32 s{d+2}, {size}\ns_mov_b32 s{d+3}, 0x20000")

def stamp_store(a, kidx, endlabel):
    a("s_memtime s[98:99]\ns_memrealtime s[100:101]\ns_waitcnt lgkmcnt(0)")
    a("s_sub_u32 s94, s94, s90\ns_sub_u32 s96, s96, s90\ns_sub_u32 s98, s98, s90\ns_sub_u32 s86, s86, s90\ns_sub_u32 s88, s88, s90")
    srd(a, 44, 18, 19, 65536, DBG_OFF)
    a("v_mov_b32 v8, s92\nv_mov_b32 v9, s100\nv_mov_b32 v10, s98\nv_mov_b32 v11, s94\nv_mov_b32 v12, s96\nv_mov_b32 v13, s86\nv_mov_b32 v14, s88\ns_sub_u32 s84, s84, s90\nv_mov_b32 v15, s84")
    a(f"s_lshl_b32 s3, s2, 5\ns_add_u32 s3, s3, {kidx*8192}\nv_mov_b32 v16, s3")
    a(f"s_cmp_lg_u32 s20, 0\ns_cbranch_scc1 {endlabel}\nbuffer_store_dwordx4 v[8:11], v16, s[44:47], 0 offen\nbuffer_store_dwordx4 v[12:15], v16, s[44:47], 0 offen offset:16")

WB, WSL = 49152, 16384
SCR = WB + 6 * WSL
FIN = SCR + 2048
CS = SCR + 4096 + 2048
STW = SCR + 8192 + 2048
K1_LDS = SCR + 16384
EP_REL = 0
K0C = -2.0 * math.sqrt(2.0 / math.pi) * math.log2(math.e)
K1C = K0C * 0.044715
def fbits(x):
    import struct
    return "0x%08x" % struct.unpack("<I", struct.pack("<f", x))[0]

def gen_k1(cfg):
    a = Asm()
    ST1 = {0: "", 1: " sc1", 2: " nt", 3: " sc0 sc1"}[cfg.get("st1", 1)]
    STH = {0: "", 1: " sc1", 2: " nt", 3: " sc0 sc1"}[cfg.get("sth", 1)]
    STF = {0: "", 1: " sc1", 2: " nt", 3: " sc0 sc1"}[cfg.get("stf", 1)]
    stamp = cfg.get("stamp", False)
    POLL_S = cfg.get("poll_s", 10)
    exp = 2 if cfg.get("force_fb") else 1
    q4 = lambda r: f"v[{r}:{r+3}]"
    d2 = lambda r: f"v[{r}:{r+1}]"
    M16 = "v_mfma_f32_16x16x32_bf16"
    stride, wsz = 3584, 1835008
    a("s_cmp_ge_u32 s2, 256\ns_cbranch_scc1 K1_END")
    a("""s_load_dwordx2 s[4:5], s[0:1], 0
         s_load_dwordx4 s[12:15], s[0:1], 48
         s_load_dwordx2 s[16:17], s[0:1], 64
         s_load_dwordx4 s[72:75], s[0:1], 80""")
    if stamp: a("s_memtime s[90:91]\ns_memrealtime s[92:93]\ns_mov_b64 s[86:87], 0\ns_mov_b64 s[88:89], 0\ns_mov_b64 s[84:85], 0")
    a("v_lshrrev_b32 v2, 6, v0\nv_and_b32 v1, 63, v0\ns_mov_b32 s40, 0xffff0000\nv_readfirstlane_b32 s20, v2")
    a("s_and_b32 s21, s2, 7\ns_lshr_b32 s22, s2, 3")
    a("s_lshr_b32 s27, s20, 2\ns_and_b32 s28, s20, 3")
    a("""v_and_b32 v20, 3, v1
         v_lshrrev_b32 v21, 2, v1
         v_lshrrev_b32 v22, 4, v1
         v_lshrrev_b32 v26, 3, v1
         v_and_b32 v27, 7, v1
         v_lshlrev_b32 v25, 4, v1""")
    a("s_mov_b32 s46, 0x200000\ns_mov_b32 s47, 0x20000")
    a("s_cmp_lt_u32 s22, 4\ns_cbranch_scc1 K1_FFT")
    a("""s_sub_u32 s22, s22, 4
         s_and_b32 s23, s21, 3
         s_lshl_b32 s23, s23, 2
         s_and_b32 s3, s22, 3
         s_add_u32 s23, s23, s3
         s_lshr_b32 s24, s21, 2
         s_mul_i32 s24, s24, 7
         s_lshr_b32 s3, s22, 2
         s_add_u32 s24, s24, s3
         s_lshl_b32 s83, s24, 8""")

    def L(txt): return [x.strip() for x in txt.split("\n") if x.strip()]

    def setup_frag():
        a("v_lshrrev_b32 v23, 5, v1\nv_and_b32 v24, 31, v1")
        a("""v_lshrrev_b32 v14, 1, v24
             v_and_b32 v14, 7, v14
             v_xor_b32 v14, v14, v23
             v_lshlrev_b32 v14, 4, v14
             v_lshlrev_b32 v15, 7, v24
             s_lshl_b32 s3, s27, 13
             v_add3_u32 v14, v14, v15, s3
             v_xor_b32 v15, 32, v14
             v_xor_b32 v16, 64, v14
             v_xor_b32 v17, 0x60, v14""")
        a(f"""v_and_b32 v29, 3, v21
              v_and_b32 v5, 1, v22
              v_lshlrev_b32 v5, 5, v5
              v_lshl_add_u32 v6, v20, 3, v5
              v_lshlrev_b32 v5, 7, v29
              v_lshl_add_u32 v5, v23, 10, v5
              v_lshl_add_u32 v29, v29, 6, v6
              v_add_u32 v5, v5, v6
              v_and_b32 v6, 1, v26
              s_and_b32 s3, s28, 1
              v_xor_b32 v6, s3, v6
              v_lshlrev_b32 v6, 6, v6
              s_lshr_b32 s3, s28, 1
              s_lshl_b32 s3, s3, 12
              s_add_u32 s3, s3, {WB}
              v_add3_u32 v5, v5, v6, s3
              v_add_u32 v6, {3*WSL}, v5""")

    def ln_finish(su, sq):
        return L(f"""v_mul_f32 v164, 0x3b000000, {su}
                 v_mul_f32 v166, 0x3b000000, {sq}
                 v_fma_f32 v166, -v164, v164, v166
                 v_max_f32 v166, 0, v166
                 v_cvt_pk_bf16_f32 v167, v164, v166
                 v_lshlrev_b32 v164, 16, v167
                 v_and_b32 v166, s40, v167
                 v_add_f32 v166, 0x3727c5ac, v166
                 v_cvt_pk_bf16_f32 v166, v166, v166
                 v_and_b32 v166, s40, v166
                 v_sqrt_f32 v166, v166
                 v_cvt_pk_bf16_f32 v166, v166, v166
                 v_and_b32 v166, s40, v166
                 v_rcp_f32 v165, v166
                 v_mul_f32 v166, v164, v165""")
    def row_part(S, T, O):
        ops = []
        for i in range(4):
            ops += [f"v_lshlrev_b32 v{T+2*i}, 16, v{S+i}", f"v_and_b32 v{T+1+2*i}, s40, v{S+i}"]
        ops += [f"v_add_f32 v{O}, v{T}, v{T+1}", f"v_mul_f32 v{O+1}, v{T}, v{T}"]
        for i in range(1, 8): ops += [f"v_fmac_f32 v{O+1}, v{T+i}, v{T+i}"]
        for i in range(2, 8): ops += [f"v_add_f32 v{O}, v{O}, v{T+i}"]
        return ops
    def row_job2():
        ops = row_part(128, 136, 146) + row_part(132, 136, 148)
        ops += L("""v_permlane32_swap_b32 v146, v148
                    v_permlane32_swap_b32 v147, v149
                    v_add_f32 v146, v146, v148
                    v_add_f32 v147, v147, v149
                    v_mov_b32 v148, v146
                    v_mov_b32 v149, v147
                    v_permlane16_swap_b32 v146, v148
                    v_permlane16_swap_b32 v147, v149
                    v_add_f32 v146, v146, v148
                    v_add_f32 v147, v147, v149""")
        for r in (8, 4, 2, 1):
            ops += [f"v_add_f32_dpp v146, v146, v146 row_ror:{r} row_mask:0xf bank_mask:0xf",
                    f"v_add_f32_dpp v147, v147, v147 row_ror:{r} row_mask:0xf bank_mask:0xf"]
        ops += ln_finish("v146", "v147")
        return ops
    def col_sum4():
        ops = []
        for i in range(4):
            for hi in range(2):
                f = (lambda t, r: f"v_and_b32 v{t}, s40, v{r}") if hi else (lambda t, r: f"v_lshlrev_b32 v{t}, 16, v{r}")
                c = 156 + 2 * i + hi
                ops += [f(152, 136 + i), f(153, 140 + i), f(154, 144 + i), f(155, 148 + i),
                        f"v_add_f32 v{c}, v152, v153", "v_add_f32 v154, v154, v155", f"v_add_f32 v{c}, v{c}, v154"]
        return ops
    def col_red():
        return L("""v_permlane32_swap_b32 v156, v160
                    v_permlane32_swap_b32 v157, v161
                    v_permlane32_swap_b32 v158, v162
                    v_permlane32_swap_b32 v159, v163
                    v_add_f32 v156, v156, v160
                    v_add_f32 v157, v157, v161
                    v_add_f32 v158, v158, v162
                    v_add_f32 v159, v159, v163
                    v_permlane16_swap_b32 v156, v158
                    v_permlane16_swap_b32 v157, v159
                    v_add_f32 v156, v156, v158
                    v_add_f32 v157, v157, v159
                    v_add_f32_dpp v156, v156, v156 row_ror:8 row_mask:0xf bank_mask:0xf
                    v_add_f32_dpp v157, v157, v157 row_ror:8 row_mask:0xf bank_mask:0xf""")

    def rj_setup():
        return L(f"""s_lshl_b32 s76, s2, 3
                 s_lshl_b32 s3, s28, 1
                 s_add_u32 s76, s76, s3
                 s_lshl_b32 s77, s76, 4
                 s_add_u32 s77, s77, {RT_REL}
                 s_lshl_b32 s76, s76, 10
                 v_and_b32 v12, 1, v26
                 v_lshlrev_b32 v12, 10, v12
                 v_lshl_add_u32 v12, v27, 6, v12
                 v_lshl_add_u32 v12, v22, 4, v12""")
    def rj_prep():
        return [f"v_mov_b32 v{172+i}, 0x3f803f80" for i in range(4)] + L("""v_and_b32 v19, 3, v21
                 v_cmp_eq_u32 s[60:61], v19, v22
                 v_cmp_eq_u32 s[80:81], 1, v20
                 v_cmp_lt_u32 s[58:59], 1, v20
                 v_cmp_eq_u32 s[56:57], 3, v20
                 v_mov_b32 v19, 0x1000000
                 v_cmp_eq_u32 vcc, 0, v1
                 v_cndmask_b32 v13, v19, 0, vcc
                 v_cmp_eq_u32 vcc, 40, v1
                 v_cndmask_b32 v13, v13, 16, vcc""")
    def rj_mfma():
        return [f"{M16} v[136:139], {q4(172)}, {q4(128)}, 0", f"{M16} v[140:143], {q4(128)}, {q4(128)}, 0",
                f"{M16} v[136:139], {q4(172)}, {q4(132)}, v[136:139]", f"{M16} v[140:143], {q4(132)}, {q4(132)}, v[140:143]"]
    def rj_finish():
        dpp = lambda r, c: f"v_add_f32_dpp v{r}, v{r}, v{r} {c} row_mask:0xf bank_mask:0xf"
        o = L("""v_cndmask_b32 v140, v140, v141, s[80:81]
                 v_cndmask_b32 v142, v142, v143, s[56:57]""")
        o += [dpp(136, "quad_perm:[1,0,3,2]"), "v_cndmask_b32 v140, v140, v142, s[58:59]", dpp(136, "quad_perm:[2,3,0,1]"),
              "v_cndmask_b32 v140, 0, v140, s[60:61]", dpp(136, "row_half_mirror")]
        o += [dpp(140, f"row_ror:{r}") for r in (8, 4, 2, 1)]
        o += L("v_mov_b32 v141, v140\nv_permlane16_swap_b32 v140, v141\nv_add_f32 v140, v140, v141")
        o += ln_finish("v136", "v140")[:-1]
        return o

    def main(role):
        U = "F" + role
        vm = Cnt(a, "vmcnt", 63); lg = Cnt(a, "lgkmcnt", 15)
        T = {}
        tl = cfg.get("tl")
        Q = []
        stage_tok = {}
        hf = 0 if role == "A" else 1
        a("""s_lshl_b32 s3, s23, 6
             s_and_b32 s31, s28, 1
             s_lshl_b32 s31, s31, 4
             s_add_u32 s3, s3, s31
             v_add_u32 v31, s3, v26
             s_bitcmp1_b32 s28, 1
             s_cselect_b32 s3, -1, 0
             v_xor_b32 v31, s3, v31
             v_xor_b32 v8, v27, v22
             v_lshlrev_b32 v8, 4, v8""")
        for j in range(2):
            o = 32 * hf + 8 * j; r = 2 + j
            a(f"s_cselect_b32 s3, {2049 - o}, {o}\nv_add_u32 v{r}, s3, v31")
            if o == 0: a(f"v_mov_b32 v4, 0x400\nv_cmp_eq_u32 vcc, 0x800, v{r}\nv_cndmask_b32 v{r}, v{r}, v4, vcc")
            a(f"v_lshl_add_u32 v{r}, v{r}, 10, v8")
            if j: a(f"v_xor_b32 v{r}, 64, v{r}")
        a(f"""s_lshr_b32 s31, s28, 1
              s_lshl_b32 s31, s31, 7
              s_add_u32 s3, s83, s31
              s_and_b32 s31, s28, 1
              s_mul_i32 s31, s31, {16*stride}
              s_add_u32 s3, s3, s31
              v_mul_u32_u24 v4, {stride}, v26
              v_and_b32 v8, 1, v22
              v_lshlrev_b32 v8, 2, v8
              v_xor_b32 v8, v8, v27
              v_lshlrev_b32 v8, 4, v8
              v_add3_u32 v4, v4, v8, s3
              v_add_u32 v8, {8*stride}, v4""")
        a(f"s_lshl_b32 s25, s28, 11\ns_add_u32 s30, s25, {WB}")
        a(f"s_mov_b32 s50, {wsz}\ns_mov_b32 s51, 0x20000")
        cur = {"s37": None}
        ROT = cfg.get("rot1", 1)
        if ROT:
            a({1: "s_and_b32 s3, s21, 3\ns_lshl_b32 s3, s3, 1\ns_lshr_b32 s31, s21, 2\ns_add_u32 s3, s3, s31",
               2: "s_and_b32 s3, s21, 3\ns_lshl_b32 s3, s3, 1",
               3: "s_lshr_b32 s3, s21, 2\ns_lshl_b32 s3, s3, 2",
               4: "s_mov_b32 s3, s21"}[ROT])
            a(f"s_lshl_b32 s26, s3, 7\ns_mul_i32 s37, s3, {64*stride}")
        def xpart(J, j):
            def f():
                if ROT: pre = "s_add_u32 s26, s26, 128\ns_and_b32 s26, s26, 1023" if (J and j == 0) else "s_nop 0"
                else: pre = f"s_mov_b32 s26, {J*128}"
                a(f"s_add_u32 m0, s25, {(J % 3) * 16384 + hf * 8192 + j * 1024}\n{pre}\nbuffer_load_dwordx4 v{2 + j}, s[44:47], s26 offen lds")
                for n in (2 * J, 2 * J + 1): stage_tok[n] = vm.n + 1
                vm.issue()
            return f
        def wpart(n, hh):
            def f():
                a(f"s_add_u32 m0, s30, {(n % 6) * WSL + hf * 8192 + hh * 1024}")
                if cur["s37"] == n or (ROT and n == 0): a("s_nop 0")
                elif not ROT: a(f"s_mov_b32 s37, {n*32*stride}")
                elif n & 1: a(f"s_add_u32 s37, s37, {32*stride}")
                else: a(f"s_add_u32 s37, s37, {32*stride}\ns_cmp_eq_u32 s37, {512*stride}\ns_cselect_b32 s37, 0, s37")
                cur["s37"] = n
                a(f"buffer_load_dwordx4 v{(4, 8)[hh]}, s[48:51], s37 offen lds")
                stage_tok[n] = vm.issue()
            return f
        for n in range(16):
            if n % 2 == 0: Q += [("X", n // 2, xpart(n // 2, j)) for j in range(2)]
            Q += [("W", n, wpart(n, hh)) for hh in range(2)]
        def pump(k, passed):
            n = 0
            while n < k and Q:
                kind, i, f = Q[0]
                if kind == "W" and i > passed + 6: break
                if kind == "X" and 2 * i - 5 > passed: break
                Q.pop(0); f(); n += 1
            return n
        a("s_waitcnt lgkmcnt(0)")
        if stamp: a("s_memtime s[86:87]")
        a(f"s_mov_b32 s44, s4\ns_mov_b32 s45, s5\ns_mov_b32 s48, s{12+2*hf}\ns_mov_b32 s49, s{13+2*hf}")
        def job_dma():
            a(f"""s_lshr_b32 s3, s23, 2
                  s_lshl_b32 s3, s3, 2
                  s_add_u32 s3, s3, s28
                  s_mul_i32 s76, s3, {32*stride}
                  s_and_b32 s3, s23, 1
                  s_lshl_b32 s3, s3, 7
                  s_add_u32 s76, s76, s3
                  s_add_u32 s76, s76, s83
                  v_mul_u32_u24 v30, {stride}, v26
                  v_lshlrev_b32 v31, 1, v22
                  v_xor_b32 v31, v31, v27
                  v_lshl_add_u32 v30, v31, 4, v30
                  s_bitcmp1_b32 s23, 1
                  s_cselect_b32 s64, s14, s12
                  s_cselect_b32 s65, s15, s13
                  s_mov_b32 s66, {wsz}
                  s_mov_b32 s67, 0x20000
                  s_lshl_b32 s29, s28, 12
                  s_add_u32 s29, s29, {SCR}""")
            for t in range(4):
                a(f"s_add_u32 m0, s29, {t*1024}\ns_nop 0\nbuffer_load_dwordx4 v30, s[64:67], s76 offen lds\ns_add_u32 s76, s76, {8*stride}"); T["jc"] = vm.issue()
        JP = cfg.get("jp", 6); INIT = cfg.get("init", 10)
        pump(4, -1)
        setup_frag()
        pump(min(JP, INIT) - 4, -1)
        if role == "B": job_dma()
        else:
            for x in rj_setup(): a(x)
            a("buffer_load_dwordx4 v[128:131], v12, s[44:47], s76 offen"); vm.issue()
            a("buffer_load_dwordx4 v[132:135], v12, s[44:47], s76 offen offset:512"); T["jc"] = vm.issue()
        pump(INIT - min(JP, INIT), -1)
        if stamp and not tl: a("s_memtime s[88:89]")
        a("s_mov_b32 s18, s74\ns_mov_b32 s19, s75")
        srd(a, 52, 18, 19, H_SZ, H_OFF)
        srd(a, 68, 18, 19, FT_SZ, F_OFF)
        bg = []
        def run_bg(k):
            for _ in range(k):
                if not bg: return
                x = bg.pop(0)
                if callable(x): x()
                else: a(x)
        if role == "A":
            a(f"s_load_dwordx2 s[66:67], s[68:69], {EP_REL}")
            for x in rj_prep(): a(x)
            a("s_waitcnt lgkmcnt(0)\ns_add_u32 s66, s66, 1\ns_addc_u32 s67, s67, 0")
        if role == "B":
            a("s_mov_b32 s74, 256\ns_mov_b32 s75, 0x20000")
            a(f"""v_lshlrev_b32 v10, 2, v1
                  s_lshl_b32 s78, s24, 12
                  s_add_u32 s78, s78, {CT_REL}
                  s_and_b32 s3, s23, 3
                  s_lshl_b32 s3, s3, 2
                  s_add_u32 s3, s3, s28
                  s_lshl_b32 s3, s3, 8
                  s_lshr_b32 s79, s23, 2
                  s_lshl_b32 s79, s79, 2
                  s_add_u32 s79, s79, s3
                  s_add_u32 s79, s79, s78
                  v_mov_b32 v31, 0x1000000
                  v_cmp_gt_u32 vcc, 16, v1
                  v_cndmask_b32 v9, v31, v25, vcc
                  v_cmp_eq_u32 vcc, 0x100, v0
                  s_and_b32 s3, s2, 63
                  s_lshl_b32 s3, s3, 2
                  v_mov_b32 v11, s3
                  v_cndmask_b32 v11, v31, v11, vcc
                  v_mov_b32 v176, 1
                  v_and_b32 v18, 3, v26
                  v_xor_b32 v18, s28, v18
                  v_lshlrev_b32 v18, 5, v18
                  v_lshl_add_u32 v18, v21, 7, v18
                  v_lshl_add_u32 v18, v20, 3, v18
                  v_add_u32 v18, {SCR}, v18
                  s_lshl_b32 s3, s28, 10
                  v_add_u32 v13, s3, v25
                  s_lshl_b32 s3, s28, 8
                  s_add_u32 s3, s3, {CS}
                  v_add_u32 v169, s3, v10
                  v_lshrrev_b32 v7, 1, v1
                  s_lshl_b32 s3, s28, 5
                  v_add_u32 v7, s3, v7
                  v_and_b32 v31, 1, v1
                  v_lshlrev_b32 v168, 10, v31
                  v_lshl_add_u32 v168, v7, 2, v168
                  v_add_u32 v168, {FIN}, v168
                  v_mov_b32 v179, {STW}""")
            for i in range(4): a(f"v_mov_b32 v{172+i}, 0x3f803f80")
            a("""s_lshl_b32 s3, s23, 6
                 s_lshr_b32 s31, s28, 1
                 s_lshl_b32 s31, s31, 5
                 s_add_u32 s3, s3, s31
                 v_lshrrev_b32 v7, 1, v1
                 v_add_u32 v7, s3, v7
                 s_bitcmp1_b32 s28, 0
                 s_cselect_b32 s3, -1, 0
                 s_cselect_b32 s31, 0x801, 0
                 v_xor_b32 v7, s3, v7
                 v_add_u32 v7, s31, v7
                 v_mov_b32 v19, 0x400
                 v_cmp_eq_u32 vcc, 0x800, v7
                 v_cndmask_b32 v7, v7, v19, vcc
                 v_lshlrev_b32 v7, 4, v7
                 v_lshl_add_u32 v7, v31, 3, v7""")
            a("s_mul_i32 s32, s23, 14\ns_add_u32 s32, s32, s24\ns_lshr_b32 s33, s32, 1\ns_and_b32 s32, s32, 1\ns_lshl_b32 s32, s32, 2\ns_add_u32 s32, s32, s28")
            a("s_lshl_b32 s34, s33, 14\ns_lshl_b32 s3, s32, 7\ns_add_u32 s34, s34, s3\ns_add_u32 s36, s34, 64")
            a("v_lshlrev_b32 v28, 10, v21\nv_lshl_add_u32 v28, v20, 4, v28")
            a("s_mul_i32 s3, s32, 112\ns_add_u32 s3, s3, s33\ns_lshl_b32 s35, s3, 11")
            a(f"v_lshlrev_b32 v31, 8, v23\nv_add3_u32 v29, v29, v31, s29")
            srd(a, 56, 16, 17, 1835008)
            srd(a, 60, 18, 19, WT_SZ, WT_OFF)
        def frag_reads(st, ksl, R):
            xo = ((st // 2) % 3) * 16384; xa = 14 + 2 * (st & 1) + ksl
            sl = st % 6; wa = 5 + sl // 3; o = (sl % 3) * WSL + ksl * 2048
            t = {}
            a(f"ds_read_b128 v[{R}:{R+3}], v{xa} offset:{xo}"); lg.issue()
            a(f"ds_read_b64_tr_b16 v[{R+8}:{R+9}], v{wa} offset:{o}"); lg.issue()
            a(f"ds_read_b64_tr_b16 v[{R+10}:{R+11}], v{wa} offset:{o + 512}"); t[0] = lg.issue()
            a(f"ds_read_b64_tr_b16 v[{R+12}:{R+13}], v{wa} offset:{o + 8192}"); lg.issue()
            a(f"ds_read_b64_tr_b16 v[{R+14}:{R+15}], v{wa} offset:{o + 8192 + 512}"); t[1] = lg.issue()
            a(f"ds_read_b128 v[{R+4}:{R+7}], v{xa} offset:{xo + 4096}")
            t[2] = t[3] = lg.issue()
            return t
        def mfma(R, i, first):
            rt, p = i >> 1, i & 1
            ac = 64 + (rt * 2 + p) * 16
            x = f"v[{R+4*rt}:{R+4*rt+3}]"; w = f"v[{R+8+4*p}:{R+11+4*p}]"
            c = "0" if first else f"v[{ac}:{ac+15}]"
            a(f"v_mfma_f32_32x32x16_bf16 v[{ac}:{ac+15}], {w}, {x}, {c}")
        X, Y = 32, 48
        JR = cfg.get("jr", 1)
        WT_S = cfg.get("wts", 4); WT_R = cfg.get("wtr", 8); PCHK = POLL_S + cfg.get("pchk", 2)
        vm.wait(stage_tok[0])
        a("s_barrier")
        if stamp: a("s_memtime s[94:95]")
        if tl: a("s_memtime s[88:89]")
        xt = frag_reads(0, 0, X)
        rate = [int(c) for c in str(cfg.get("rate" + role, cfg.get("rate", "r22222222")))[1:]]
        dflt = {"A": (1, 2), "B": (2, 1)}[role]
        R_ = lambda hs: rate[hs] if hs < len(rate) else dflt[hs & 1] + cfg.get("rplus", 0)
        BGK = cfg.get("bgk", 4)
        for s in range(16):
            cur["s"] = s
            if role == "B":
                yt = frag_reads(s, 1, Y)
                if s == JR:
                    for u in range(8):
                        a(f"ds_read_b64_tr_b16 v[{136+2*u}:{137+2*u}], v18 offset:{u*2048}"); T["jr"] = lg.issue()
                if s == WT_R:
                    vm.wait(T["wt"])
                    for u in range(2):
                        a(f"ds_read_b64_tr_b16 v[{192+4*u}:{193+4*u}], v29 offset:{u*1024}"); lg.issue()
                        a(f"ds_read_b64_tr_b16 v[{194+4*u}:{195+4*u}], v29 offset:{u*1024+512}"); lg.issue()
            for i in range(4):
                lg.wait(xt[i])
                mfma(X, i, s == 0)
                if i == 0: left = R_(2 * s)
                if role == "A" and i == 0: yt = frag_reads(s, 1, Y)
                else:
                    k = (left + (3 - i)) // (4 - i)
                    left -= pump(k, s - 1) if k else 0
                if role == "A" and s == JR:
                    if i == 0: vm.wait(T["jc"])
                    a(rj_mfma()[i])
                run_bg(BGK)
            if role == "A" and s == JR:
                def row_store():
                    a("v_mov_b32 v166, s66\nv_mov_b32 v167, s67\nbuffer_store_dwordx4 v[164:167], v13, s[68:71], s77 offen sc1"); T["cs"] = vm.issue(); T["cs_s"] = cur["s"]
                bg += rj_finish() + [row_store]
            if role == "B":
                if s == 15:
                    a(f"v_cmp_ne_u32 vcc, 0, v177\ns_cbranch_vccnz K1_SLOW{U}")
                    vm.wait(T["tab"])
                    a("v_add_f32 v128, v128, v129\nv_add_f32 v130, v130, v131")
                    a("ds_write2_b32 v168, v164, v165 offset1:128"); lg.issue()
                    a("v_add_f32 v128, v128, v130")
                    a("ds_write_b32 v169, v128"); lg.issue()
                    a.label(f"K1_BACK{U}")
                if s == PCHK:
                    a(f"s_cmp_lg_u32 s20, 4\ns_cbranch_scc1 K1_NP{U}\ns_mov_b32 s85, 0")
                    a.label(f"K1_PL{U}")
                    a(f"""s_waitcnt vmcnt(0)
                          v_cmp_ne_u32 vcc, {3 + exp}, v177
                          v_mov_b32 v180, 0
                          s_cbranch_vccz K1_PW{U}
                          v_mov_b32 v180, 1
                          s_add_u32 s85, s85, 1
                          s_cmp_ge_u32 s85, {cfg.get("fbmax", 200)}
                          s_cbranch_scc1 K1_PW{U}
                          s_sleep 8
                          buffer_load_dword v177, v10, s[72:75], 0 offen sc1
                          s_branch K1_PL{U}""")
                    a.label(f"K1_PW{U}")
                    a("ds_write_b32 v179, v180\ns_waitcnt lgkmcnt(0)")
                    a.label(f"K1_NP{U}")
            vt = stage_tok.get(s + 1); ft = None
            if role == "B" and s == JR - 1: vt = max(vt or 0, T["jc"])
            if s == JR + cfg.get("fdelay", 3):
                assert T["cs_s"] < s if role == "A" else True
                ft = T["cs"]; vt = max(vt or 0, ft)
            if tl: a("s_memtime s[98:99]"); lg.issue()
            wait2(a, vm, vt, lg, lg.n)
            if tl: a(f"s_sub_u32 s98, s98, s90\nv_writelane_b32 v240, s98, {32+s}\ns_memtime s[98:99]\ns_waitcnt lgkmcnt(0)\ns_sub_u32 s98, s98, s90\nv_writelane_b32 v242, s98, {s}")
            if tl: a(f"s_sub_u32 s88, s88, s90\nv_writelane_b32 v240, s88, {s}")
            a("s_barrier")
            if tl: a("s_memtime s[88:89]")
            def nxt_reads():
                if s < 15: return frag_reads(s + 1, 0, X)
                epi_reads(lg)
            if role == "B":
                if s == PCHK:
                    a("ds_read_b32 v177, v179"); T["vd"] = lg.issue()
                    a(f"s_mov_b32 s3, {RT_REL}\nbuffer_load_dwordx2 v[164:165], v7, s[68:71], s3 offen sc1"); vm.issue()
                    a("buffer_load_dwordx4 v[128:131], v13, s[68:71], s78 offen sc1"); T["tab"] = vm.issue()
                xt = nxt_reads()
                if ft is not None:
                    a("buffer_atomic_add v176, v11, s[72:75], 0 offen sc1"); vm.issue()
                if s == POLL_S:
                    a(f"s_cmp_lg_u32 s20, 4\ns_cbranch_scc1 K1_NL{U}\nbuffer_load_dword v177, v10, s[72:75], 0 offen sc1")
                    a.label(f"K1_NL{U}")
                if s == WT_S:
                    a("s_mov_b32 m0, s29\ns_nop 0\nbuffer_load_dwordx4 v28, s[56:59], s34 offen lds"); vm.issue()
                    a("s_add_u32 m0, s29, 1024\ns_nop 0\nbuffer_load_dwordx4 v28, s[56:59], s36 offen lds"); T["wt"] = vm.issue()
                if s == WT_R:
                    a("buffer_store_dwordx4 v[192:195], v25, s[60:63], s35 offen" + ST1); vm.issue()
                    a("buffer_store_dwordx4 v[196:199], v25, s[60:63], s35 offen offset:1024" + ST1); vm.issue()
            for i in range(4):
                mfma(Y, i, False)
                if i == 0: left = R_(2 * s + 1)
                if not (role == "A" and i == 0):
                    k = (left + (3 - i)) // (4 - i)
                    left -= pump(k, s) if k else 0
                if role == "A" and i == 0: xt = nxt_reads()
                run_bg(BGK)
                if role == "B" and s == JR:
                    a(f"{M16} v[152:155], {q4(172)}, {q4(136+4*i)}, {'v[152:155]' if i else 0}")
            if role == "B" and s == JR: T["csd"] = 1
            if role == "B" and s == JR:
                a("buffer_store_dword v152, v9, s[68:71], s79 offen sc1"); T["cs"] = vm.issue()
        assert not Q and not bg
        if stamp: a("s_memtime s[96:97]")
        if tl:
            a("s_waitcnt lgkmcnt(0)\ns_sub_u32 s88, s88, s90\nv_writelane_b32 v240, s88, 16\ns_sub_u32 s88, s96, s90\nv_writelane_b32 v240, s88, 17")
            srd(a, 80, 18, 19, 0x100000, DBG_OFF + 0x10000)
            a("s_lshl_b32 s3, s2, 3\ns_add_u32 s3, s3, s20\ns_lshl_b32 s3, s3, 9\nv_lshlrev_b32 v241, 2, v1\nbuffer_store_dword v240, v241, s[80:83], s3 offen\nbuffer_store_dword v242, v241, s[80:83], s3 offen offset:256")
        def slow():
            a.label(f"K1_SLOW{U}")
            a("s_waitcnt vmcnt(0) ; hz:barrier")
            a(f"""v_lshlrev_b32 v168, 2, v23
                  s_lshl_b32 s3, s28, 7
                  s_add_u32 s3, s3, {FIN}
                  v_add_u32 v168, s3, v168
                  v_lshlrev_b32 v170, 5, v27
                  v_lshl_add_u32 v170, v22, 3, v170
                  s_lshl_b32 s3, s28, 8
                  s_add_u32 s3, s3, {CS}
                  v_add_u32 v170, s3, v170
                  s_mov_b32 s84, 0""")
            a.label(f"K1_SLOW{U}_R")
            a("""s_add_u32 s85, s84, 2 ; hz:barrier
                 v_readlane_b32 s76, v7, s84
                 v_readlane_b32 s77, v7, s85
                 s_lshl_b32 s76, s76, 6
                 s_lshl_b32 s77, s77, 6
                 buffer_load_dwordx4 v[128:131], v25, s[44:47], s76 offen
                 buffer_load_dwordx4 v[132:135], v25, s[44:47], s77 offen
                 s_waitcnt vmcnt(0)""")
            for x in row_job2(): a(x)
            a(f"ds_write2_b32 v168, v164, v165 offset1:128\nv_add_u32 v168, 8, v168\ns_add_u32 s84, s84, 4\ns_cmp_lt_u32 s84, 64\ns_cbranch_scc1 K1_SLOW{U}_R")
            a(f"""s_bitcmp1_b32 s28, 1
                  s_cselect_b32 s64, s14, s12
                  s_cselect_b32 s65, s15, s13
                  s_mov_b32 s66, {wsz}
                  s_mov_b32 s67, 0x20000
                  v_mul_u32_u24 v30, {stride}, v26
                  s_and_b32 s3, s28, 1
                  s_lshl_b32 s3, s3, 7
                  s_add_u32 s3, s3, s83
                  v_lshlrev_b32 v31, 4, v27
                  v_add3_u32 v30, v30, v31, s3
                  s_mov_b32 s76, 0""")
            for i in range(8): a(f"v_mov_b32 v{176+i}, 0")
            a.label(f"K1_SLOW{U}_C")
            a("s_nop 0 ; hz:barrier")
            for t in range(4):
                a(f"buffer_load_dwordx4 v[{136+4*t}:{139+4*t}], v30, s[64:67], s76 offen\ns_add_u32 s76, s76, {8*stride}")
            a("s_waitcnt vmcnt(0)")
            for x in col_sum4(): a(x)
            for i in range(8): a(f"v_add_f32 v{176+i}, v{176+i}, v{156+i}")
            a(f"s_cmp_lt_u32 s76, {512*stride}\ns_cbranch_scc1 K1_SLOW{U}_C")
            for i in range(8): a(f"v_mov_b32 v{156+i}, v{176+i}")
            for x in col_red(): a(x)
            a(f"ds_write_b64 v170, v[156:157]\ns_branch K1_BACK{U}")
        return slow

    def epi_reads(lg):
        a(f"s_lshl_b32 s3, s28, 7\ns_add_u32 s3, s3, {CS}\nv_lshl_add_u32 v164, v23, 4, s3")
        a(f"s_lshl_b32 s3, s27, 8\ns_add_u32 s3, s3, {FIN}\nv_lshl_add_u32 v165, v24, 2, s3")
        for rt in range(2):
            a(f"ds_read_b32 v{160+rt}, v165 offset:{rt*128}"); lg.issue()
            a(f"ds_read_b32 v{162+rt}, v165 offset:{512+rt*128}"); lg.issue()
        for p in range(2):
            for g in range(4):
                r = 128 + (p * 4 + g) * 4
                a(f"ds_read_b128 v[{r}:{r+3}], v164 offset:{p*512+g*32}"); lg.issue()

    def stamps_out():
        if not stamp: return
        stamp_store(a, 0, "K1_END")

    a("s_cmp_lg_u32 s27, 0\ns_cbranch_scc1 K1_FB")
    main("A")
    a.label("K1_FEPI")
    a("s_waitcnt lgkmcnt(0) ; hz:barrier\ns_nop 7\ns_nop 7")
    a(f"s_mov_b32 s41, {fbits(K0C)}\ns_mov_b32 s42, {fbits(K1C)}")
    for rt in range(2):
        r = 162 + rt; b = 32 + rt * 4
        a(f"""v_mul_f32 v{b+3}, v{r}, v{r}
              v_mul_f32 v{b}, s41, v{r}
              v_mul_f32 v{b+1}, s42, v{r}
              v_rcp_f32 v{b+2}, v{b+3}
              v_mul_f32 v{b+1}, v{b+1}, v{b+3}""")
    a("s_lshl_b32 s3, s23, 1\ns_add_u32 s3, s3, s27\ns_mul_i32 s3, s3, 112\ns_lshl_b32 s31, s24, 3\ns_add_u32 s3, s3, s31\ns_lshl_b32 s31, s28, 1\ns_add_u32 s3, s3, s31\ns_lshl_b32 s38, s3, 11")
    for rt in range(2):
        m = 160 + rt; b = 32 + rt * 4
        for j in range(2):
            T = 40 + 0
            ops = [[] for _ in range(9)]
            for e in range(0, 8, 2):
                idx = j * 8 + e
                ag = 64 + (rt * 2) * 16 + idx; au = ag + 16
                cg_ = 128 + idx; cu = 144 + idx
                tg, tu, z = T + e, T + 8 + e, T + 16 + e
                mo = f"op_sel:[{rt},0,0] op_sel_hi:[{rt},1,1] neg_lo:[1,0,0] neg_hi:[1,0,0]"
                seq = [[f"v_pk_fma_f32 {d2(tg)}, v[160:161], {d2(cg_)}, {d2(ag)} {mo}"],
                       [f"v_pk_fma_f32 {d2(tu)}, v[160:161], {d2(cu)}, {d2(au)} {mo}"],
                       [f"v_pk_mul_f32 {d2(z)}, {d2(tg)}, {d2(tg)}"],
                       [f"v_pk_fma_f32 {d2(z)}, {d2(z)}, {d2(b)}, {d2(b)} op_sel:[0,1,0] op_sel_hi:[1,1,0]"],
                       [f"v_pk_mul_f32 {d2(z)}, {d2(z)}, {d2(tg)}"],
                       [f"v_exp_f32 v{z}, v{z}", f"v_exp_f32 v{z+1}, v{z+1}"],
                       [f"v_pk_mul_f32 {d2(tu)}, {d2(tu)}, {d2(tg)}"],
                       [f"v_pk_fma_f32 {d2(z)}, {d2(z)}, {d2(b+2)}, {d2(b+2)} op_sel:[0,0,0] op_sel_hi:[1,0,0]"],
                       [f"v_rcp_f32 v{z}, v{z}", f"v_rcp_f32 v{z+1}, v{z+1}"]]
                for k_, s_ in enumerate(seq): ops[k_] += s_
            for k_ in range(9):
                for s_ in ops[k_]: a(s_)
            for e in range(0, 8, 2): a(f"v_pk_mul_f32 {d2(T+8+e)}, {d2(T+8+e)}, {d2(T+16+e)}")
            O = 164 + 4 * ((rt * 2 + j) & 1)
            for q in range(4): a(f"v_cvt_pk_bf16_f32 v{O+q}, v{T+8+2*q}, v{T+9+2*q}")
            a(f"buffer_store_dwordx4 v[{O}:{O+3}], v25, s[52:55], s38 offen offset:{j*2048+rt*1024}" + STH)
    if cfg.get("k1delay"): a(f"s_sleep {cfg['k1delay']}")
    stamps_out()
    a("s_endpgm")
    a.label("K1_FB")
    a("s_nop 4 ; hz:barrier")
    slowF = main("B")
    a("s_branch K1_FEPI")
    slowF()

    a.label("K1_FFT")
    a("s_lshl_b32 s29, s21, 2 ; hz:barrier\ns_add_u32 s29, s29, s22\nv_and_b32 v14, 15, v1")
    for x in rj_setup(): a(x)
    a("""s_waitcnt lgkmcnt(0)
         s_mov_b32 s44, s4
         s_mov_b32 s45, s5
         s_cmp_lg_u32 s27, 0
         s_cbranch_scc1 K1_X1
         buffer_load_dwordx4 v[128:131], v12, s[44:47], s76 offen
         buffer_load_dwordx4 v[132:135], v12, s[44:47], s76 offen offset:512""")
    a.label("K1_X1")
    a("s_mov_b32 s18, s74 ; hz:barrier\ns_mov_b32 s19, s75\ns_mov_b32 s74, 256\ns_mov_b32 s75, 0x20000")
    srd(a, 52, 18, 19, Z_SZ, Z_OFF)
    srd(a, 68, 18, 19, FT_SZ, F_OFF)
    a(f"s_load_dwordx2 s[66:67], s[68:69], {EP_REL}")
    FR, FI, TW, GC, GS, GN, GA, ONE, tmp = 96, 104, 112, 216, 220, 224, 232, 236, 200
    C = L(f"""s_lshl_b32 s3, s28, 4
              v_add_u32 v15, s3, v14
              v_cvt_f32_u32 v16, v15
              v_cvt_f32_u32 v17, v22
              v_cvt_f32_u32 v18, v14
              v_mul_f32 v16, 0x3c800000, v16
              v_mul_f32 v18, 0x3d000000, v18
              v_mul_f32 v19, v16, v17
              v_mul_f32 v19, 0x41000000, v19
              s_mov_b32 s41, 0x80008000
              v_and_b32 v5, 1, v15
              v_mul_lo_u32 v5, v5, s41
              v_and_b32 v6, 1, v1
              v_mul_lo_u32 v6, v6, s41""")
    C += [f"v_fmamk_f32 v{tmp+j}, v16, {fbits(float(j))}, v19" for j in range(8)]
    C += [f"v_fract_f32 v{tmp+j}, v{tmp+j}" for j in range(8)]
    C += [f"v_sin_f32 v{tmp+8+j}, v{tmp+j}" for j in range(8)]
    C += [f"v_cos_f32 v{tmp+j}, v{tmp+j}" for j in range(8)]
    C += [f"v_cvt_pk_bf16_f32 v{FI+i}, v{tmp+8+2*i}, v{tmp+9+2*i}" for i in range(4)]
    C += [f"v_cvt_pk_bf16_f32 v{FR+i}, v{tmp+2*i}, v{tmp+1+2*i}" for i in range(4)]
    C += [f"v_xor_b32 v{FI+i}, s41, v{FI+i}" for i in range(4)]
    for b in (FR, FI): C += [f"v_xor_b32 v{b+4+i}, v5, v{b+i}" for i in range(4)]
    n2s = [16 * (i >> 2) + (i & 3) for i in range(8)]
    C += L("v_mul_f32 v16, 0x3d000000, v16\nv_mul_f32 v19, v16, v17\nv_mul_f32 v19, 4.0, v19")
    C += [f"v_fmamk_f32 v{tmp+i}, v16, {fbits(float(n2s[i]))}, v19" for i in range(8)]
    C += [f"v_cos_f32 v{TW+i}, v{tmp+i}" for i in range(8)]
    C += [f"v_sin_f32 v{TW+8+i}, v{tmp+i}" for i in range(8)]
    C += L("v_mul_f32 v19, v18, v17\nv_mul_f32 v19, 4.0, v19")
    C += [f"v_fmamk_f32 v{tmp+i}, v18, {fbits(float(i))}, v19" for i in range(4)]
    C += [f"v_fract_f32 v{tmp+i}, v{tmp+i}" for i in range(4)]
    C += [f"v_sin_f32 v{tmp+4+i}, v{tmp+i}" for i in range(4)]
    C += [f"v_cos_f32 v{tmp+i}, v{tmp+i}" for i in range(4)]
    C += [f"v_cvt_pk_bf16_f32 v{GS+i}, v{tmp+4+2*i}, v{tmp+5+2*i}" for i in range(2)]
    C += [f"v_cvt_pk_bf16_f32 v{GC+i}, v{tmp+2*i}, v{tmp+1+2*i}" for i in range(2)]
    for b in (GC, GS): C += [f"v_xor_b32 v{b+2+i}, v6, v{b+i}" for i in range(2)]
    C += [f"v_xor_b32 v{GN+i}, s41, v{GS+i}" for i in range(4)]
    C += [f"v_mov_b32 v{GA+i}, 0xbf803f80" for i in range(4)]
    C += L(f"""v_lshrrev_b32 v2, 1, v1
               v_and_b32 v3, 1, v1
               v_lshlrev_b32 v4, 10, v2
               v_lshl_add_u32 v4, v3, 4, v4
               s_lshl_b32 s25, s20, 18
               s_lshl_b32 s3, s29, 5
               s_add_u32 s25, s25, s3
               v_lshlrev_b32 v5, 4, v2
               s_lshl_b32 s78, s20, 12
               s_add_u32 s78, s78, {RT_REL}
               v_lshrrev_b32 v6, 4, v2
               v_lshlrev_b32 v6, 11, v6
               v_and_b32 v7, 15, v2
               v_lshl_add_u32 v6, v7, 4, v6
               v_mul_u32_u24 v7, {8*4096+64}, v3
               s_lshl_b32 s3, s27, 10
               s_lshl_b32 s31, s28, 8
               s_add_u32 s3, s3, s31
               v_add3_u32 v6, v6, v7, s3
               s_mul_i32 s3, s27, {8*4096+64}
               v_add_u32 v7, s3, v25
               v_lshlrev_b32 v8, 19, v22
               v_lshl_add_u32 v8, v14, 4, v8
               s_lshr_b32 s38, s28, 1
               s_lshl_b32 s38, s38, 16
               s_lshl_b32 s3, s29, 11
               s_add_u32 s38, s38, s3
               s_lshl_b32 s3, s27, 9
               s_add_u32 s38, s38, s3
               s_and_b32 s3, s28, 1
               s_lshl_b32 s3, s3, 8
               s_add_u32 s38, s38, s3
               s_cmp_eq_u32 s28, 0
               s_cselect_b32 s64, 1, 0
               s_mov_b32 s65, 0
               v_mov_b32 v31, 0x1000000
               v_mov_b32 v30, 1
               v_cmp_eq_u32 vcc, 0, v0
               s_lshl_b32 s3, s2, 2
               v_mov_b32 v11, s3
               v_cndmask_b32 v11, v31, v11, vcc
               v_cndmask_b32 v24, v31, 0, vcc""")
    def slab():
        for j in range(8):
            a(f"buffer_load_dwordx4 {q4(64+4*j)}, v4, s[44:47], s25 offen")
            if j < 7: a("s_add_u32 s25, s25, 0x8000")
    SL = C[C.index("v_lshrrev_b32 v2, 1, v1"):C.index("v_lshlrev_b32 v5, 4, v2")]
    C = [x for i, x in enumerate(C) if not (C.index("v_lshrrev_b32 v2, 1, v1") <= i < C.index("v_lshlrev_b32 v5, 4, v2"))]
    for x in SL: a(x)
    a("s_cmp_eq_u32 s27, 0\ns_cbranch_scc1 K1_XR")
    slab()
    for x in C: a(x)
    a(f"s_waitcnt lgkmcnt(0)\ns_add_u32 s66, s66, {exp}\ns_addc_u32 s67, s67, 0")
    a("s_barrier\ns_barrier\ns_branch K1_XC")
    a.label("K1_XR")
    a("s_nop 0 ; hz:barrier")
    for x in rj_prep(): a(x)
    a("s_waitcnt vmcnt(0)")
    for x in rj_mfma() + rj_finish(): a(x)
    a("s_waitcnt lgkmcnt(0)\ns_add_u32 s66, s66, 1\ns_addc_u32 s67, s67, 0\nv_mov_b32 v166, s66\nv_mov_b32 v167, s67")
    if cfg.get("force_fb"): a("s_add_u32 s66, s66, 1")
    a("s_barrier")
    a("buffer_store_dwordx4 v[164:167], v13, s[68:71], s77 offen sc1")
    if stamp: a("s_memtime s[86:87]")
    slab()
    for x in C: a(x)
    a("s_waitcnt vmcnt(8)\ns_barrier")
    a("buffer_atomic_add v30, v11, s[72:75], 0 offen sc1")
    a.label("K1_XC")
    XU = 128; RM = 32
    def poll(tag, bound, out):
        a("s_movk_i32 s82, 0xff\ns_mov_b32 s83, 0")
        a.label(f"K1_{tag}P")
        a("s_nop 0 ; hz:barrier")
        for j in range(8):
            a(f"s_bitcmp1_b32 s82, {j}\ns_cbranch_scc0 K1_{tag}P{j}\nbuffer_load_dwordx4 {q4(RM+4*j)}, v5, s[68:71], s78 offen offset:{j*512} sc1")
            a.label(f"K1_{tag}P{j}")
        if tag == "X":
            a(f"s_cmp_lg_u32 s83, 0\ns_cbranch_scc1 K1_XU\ns_waitcnt vmcnt(8)")
            if stamp: a("s_memtime s[84:85]")
            for j in range(8):
                for i in range(4):
                    a(f"v_lshlrev_b32 v{XU+8*j+2*i}, 16, v{64+4*j+i}\nv_and_b32 v{XU+8*j+2*i+1}, s40, v{64+4*j+i}")
            a.label("K1_XU")
        a("s_waitcnt vmcnt(0)\ns_mov_b32 s82, 0")
        for j in range(8):
            a(f"""v_cmp_ne_u64 vcc, s[66:67], {d2(RM+4*j+2)}
                  s_cmp_lg_u64 vcc, 0
                  s_cselect_b32 s3, {1 << j}, 0
                  s_or_b32 s82, s82, s3""")
        a(f"s_cbranch_scc0 {out}\ns_add_u32 s83, s83, 1")
        if bound: a(f"s_cmp_ge_u32 s83, {bound}\ns_cbranch_scc1 K1_XSLOW")
        a(f"s_sleep {cfg.get('xsleep', 8)}\ns_branch K1_{tag}P")
    a("s_mov_b32 s39, 0 ; hz:barrier")
    poll("X", cfg.get("fbmax2", 300), "K1_XBACK")
    a.label("K1_XBACK")
    a("s_nop 0 ; hz:barrier")
    if stamp: a("s_memtime s[88:89]")
    for j in range(8): a(f"v_mul_f32 v{RM+4*j}, v{RM+4*j}, v{RM+4*j+1}")
    for jp in range(4):
        for j in (2 * jp, 2 * jp + 1):
            for i in range(4):
                x = XU + 8 * j + 2 * i
                a(f"v_pk_fma_f32 {d2(x)}, {d2(x)}, {d2(RM+4*j)}, {d2(RM+4*j)} op_sel:[0,1,0] op_sel_hi:[1,1,0] neg_lo:[0,0,1] neg_hi:[0,0,1]")
        for dd in range(8):
            a(f"v_cvt_pk_bf16_f32 v{64+4*dd+jp}, v{XU+16*jp+dd}, v{XU+16*jp+8+dd}")
    for dd in range(8): a(f"ds_write_b128 v6, {q4(64+4*dd)} offset:{dd*4096}")
    a("s_waitcnt lgkmcnt(0)\ns_barrier")
    if stamp: a("s_memtime s[94:95]")
    lg = Cnt(a, "lgkmcnt", 15)
    AF = [64, 80]; YS = [168, 184]; PR, PI = 152, 156; XO = [128, 140]; OR_, OI_ = 32, 48
    rtok = {}
    def rd(c):
        for f in range(4):
            a(f"ds_read_b128 {q4(AF[c&1]+4*f)}, v7 offset:{c*4096+f*1024}"); rtok[(c, f)] = lg.issue()
    def s1(c):
        o = []
        for ks in range(2):
            for tile in range(2):
                f = tile * 2 + ks
                for B, yo in ((FR, 0), (FI, 8)):
                    y = YS[c & 1] + yo + 4 * tile
                    o.append((rtok[(c, f)], f"{M16} {q4(y)}, {q4(AF[c&1]+4*f)}, {q4(B+4*ks)}, {'0' if ks == 0 else q4(y)}"))
        return o
    def tw(c):
        YR, YI = YS[c & 1], YS[c & 1] + 8
        o = [f"v_mul_f32 v{tmp+i}, v{YR+i}, v{TW+i}" for i in range(8)]
        o += [f"v_mul_f32 v{tmp+8+i}, v{YI+i}, v{TW+i}" for i in range(8)]
        o += [f"v_fmac_f32 v{tmp+i}, v{YI+i}, v{TW+8+i}" for i in range(8)]
        o += [f"v_fma_f32 v{tmp+8+i}, -v{YR+i}, v{TW+8+i}, v{tmp+8+i}" for i in range(8)]
        o += [f"v_cvt_pk_bf16_f32 v{PR+i}, v{tmp+2*i}, v{tmp+1+2*i}" for i in range(4)]
        o += [f"v_cvt_pk_bf16_f32 v{PI+i}, v{tmp+8+2*i}, v{tmp+9+2*i}" for i in range(4)]
        return o
    def s2(c):
        X = XO[c & 1]
        return [f"{M16} {q4(X)}, {q4(GC)}, {q4(PR)}, 0", f"{M16} {q4(X+4)}, {q4(GN)}, {q4(PR)}, 0", f"{M16} {q4(X+8)}, {q4(GA)}, {q4(PR)}, 0",
                f"{M16} {q4(X)}, {q4(GS)}, {q4(PI)}, {q4(X)}", f"{M16} {q4(X+4)}, {q4(GC)}, {q4(PI)}, {q4(X+4)}"]
    def pack(c):
        o = [f"v_cndmask_b32 v{XO[k]+4}, v{XO[k]+4}, v{XO[k]+8}, s[64:65]" for k in range(2)]
        for r in range(4):
            o += [f"v_cvt_pk_bf16_f32 v{OR_+4*r+c//2}, v{XO[0]+r}, v{XO[1]+r}", f"v_cvt_pk_bf16_f32 v{OI_+4*r+c//2}, v{XO[0]+4+r}, v{XO[1]+4+r}"]
        return o
    rd(0); rd(1)
    for tok, m in s1(0): lg.wait(tok); a(m)
    pend = []
    for c in range(8):
        fill = pend + tw(c); pend = []
        if c < 7:
            ms = s1(c + 1); n = len(ms); p = 0
            for i, (tok, m) in enumerate(ms):
                lg.wait(tok); a(m)
                qn = (len(fill) * (i + 1)) // n
                while p < qn: a(fill[p]); p += 1
            if c + 2 < 8: rd(c + 2)
        else:
            for x in fill: a(x)
        for m in s2(c): a(m)
        if c & 1: pend = pack(c)
    for x in pend: a(x)
    if stamp: a("s_memtime s[96:97]")
    for r in range(4):
        a(f"buffer_store_dwordx4 {q4(OR_+4*r)}, v8, s[52:55], s38 offen" + STF)
        a(f"buffer_store_dwordx4 {q4(OI_+4*r)}, v8, s[52:55], s38 offen offset:1024" + STF)
        if r < 3: a("s_add_u32 s38, s38, 0x20000")
    a("s_cmp_eq_u32 s29, 0\ns_cbranch_scc1 K1_XE")
    a.label("K1_XDONE")
    stamps_out()
    a("s_endpgm")
    a.label("K1_XE")
    if cfg.get("force_fb"): a("s_sub_u32 s66, s66, 1 ; hz:barrier")
    a("s_cmp_eq_u32 s39, 0 ; hz:barrier\ns_cbranch_scc1 K1_XE2\ns_waitcnt vmcnt(0)")
    poll("E", 0, "K1_XE2")
    a.label("K1_XE2")
    a(f"""s_barrier ; hz:barrier
          v_mov_b32 v2, s66
          v_mov_b32 v3, s67
          buffer_store_dwordx2 v[2:3], v24, s[68:71], 0 offen offset:{EP_REL} sc1
          s_branch K1_XDONE""")
    a.label("K1_XSLOW")
    XT = 0x11000
    a(f"""s_mov_b32 s39, 1 ; hz:barrier
          s_lshl_b32 s76, s20, 18
          s_lshl_b32 s3, s20, 12
          s_add_u32 s3, s3, {XT}
          v_lshrrev_b32 v13, 5, v1
          v_lshlrev_b32 v13, 4, v13
          v_add_u32 v13, s3, v13
          v_add_u32 v12, s3, v5
          s_mov_b32 s84, 0""")
    for i in range(40): a(f"v_mov_b32 v{32+i}, v{128+i}")
    a.label("K1_XSLOW_R")
    a("""buffer_load_dwordx4 v[128:131], v25, s[44:47], s76 offen ; hz:barrier
         buffer_load_dwordx4 v[132:135], v25, s[44:47], s76 offen offset:1024
         s_waitcnt vmcnt(0)""")
    for x in row_job2(): a(x)
    a("""ds_write_b128 v13, v[164:167]
         v_add_u32 v13, 32, v13
         s_add_u32 s76, s76, 2048
         s_add_u32 s84, s84, 1
         s_cmp_lt_u32 s84, 128
         s_cbranch_scc1 K1_XSLOW_R
         s_waitcnt lgkmcnt(0)""")
    for i in range(40): a(f"v_mov_b32 v{128+i}, v{32+i}")
    for j in range(8): a(f"ds_read_b64 v[{RM+4*j}:{RM+4*j+1}], v12 offset:{j*512}")
    a("s_waitcnt lgkmcnt(0)\ns_branch K1_XBACK")
    a.label("K1_END")
    lines, n = hz.fix(a.l)
    return "\n".join(lines), 244

PL2 = 64 * 272
K2_LDS = 8 * PL2
def gen_k2(cfg):
    a = Asm()
    stamp = cfg.get("stamp", False)
    D = cfg.get("depth", 8); NR = 11; BK = cfg.get("bk", 18)
    L = lambda txt: [x.strip() for x in txt.split("\n") if x.strip()]
    q4 = lambda r: f"v[{r}:{r+3}]"
    M32 = "v_mfma_f32_32x32x16_bf16"
    a("s_cmp_ge_u32 s2, 256\ns_cbranch_scc1 K2_END")
    a("s_load_dwordx2 s[18:19], s[0:1], 88\ns_load_dwordx2 s[4:5], s[0:1], 0\ns_load_dwordx2 s[6:7], s[0:1], 72")
    if stamp: a("s_memtime s[90:91]\ns_memrealtime s[92:93]\ns_mov_b64 s[86:87], 0\ns_mov_b64 s[88:89], 0\ns_mov_b64 s[94:95], 0\ns_mov_b64 s[96:97], 0")
    a("v_lshrrev_b32 v2, 6, v0\nv_and_b32 v1, 63, v0\nv_lshlrev_b32 v3, 4, v1\nv_readfirstlane_b32 s20, v2")
    if cfg.get("map2", 0) == 1:
        a("s_and_b32 s21, s2, 7\ns_lshr_b32 s22, s2, 3\ns_and_b32 s23, s21, 3\ns_lshl_b32 s23, s23, 3\ns_and_b32 s3, s21, 4\ns_add_u32 s23, s23, s3\ns_lshr_b32 s3, s22, 3\ns_add_u32 s23, s23, s3\ns_and_b32 s24, s22, 7")
    else:
        a("s_and_b32 s21, s2, 7\ns_lshr_b32 s22, s2, 3\ns_lshl_b32 s23, s21, 2\ns_lshr_b32 s3, s22, 3\ns_add_u32 s23, s23, s3\ns_and_b32 s24, s22, 7")
    a("s_cmp_ge_u32 s20, 4\ns_cbranch_scc1 K2_S")
    PLW = f"""v_and_b32 v15, 31, v1
         v_lshrrev_b32 v16, 5, v1
         v_mul_u32_u24 v5, 272, v15
         v_lshl_add_u32 v5, v16, 4, v5
         s_mul_i32 s35, s20, {PL2}
         v_add_u32 v5, s35, v5"""
    def stamps():
        if stamp:
            a("s_and_b32 s3, s20, 3\ns_cmp_lg_u32 s3, 0\ns_cbranch_scc1 K2_END\ns_lshr_b32 s31, s20, 2\ns_mov_b32 s20, 0\ns_lshl_b32 s31, s31, 8\ns_add_u32 s2, s2, s31")
            stamp_store(a, 1, "K2_END")
    vm = Cnt(a, "vmcnt", 63)
    a("s_mul_i32 s3, s20, 28\ns_mul_i32 s25, s23, 112\ns_add_u32 s25, s25, s3\ns_lshl_b32 s25, s25, 11\ns_mul_i32 s26, s24, 112\ns_add_u32 s26, s26, s3\ns_lshl_b32 s26, s26, 11")
    a(f"s_mov_b32 s46, {H_SZ}\ns_mov_b32 s47, 0x20000\ns_mov_b32 s50, {WT_SZ}\ns_mov_b32 s51, 0x20000")
    R2 = cfg.get("rot2", "")
    if R2:
        ca, cb, cc = [int(x) for x in R2[1:].split("_")]
        a(f"""s_mul_i32 s27, s24, {ca}
              s_and_b32 s3, s23, 3
              s_mul_i32 s3, s3, {cb}
              s_add_u32 s27, s27, s3
              s_mul_i32 s3, s21, {cc}
              s_add_u32 s27, s27, s3
              s_lshr_b32 s27, s27, 2
              s_mul_i32 s3, s27, 4682
              s_lshr_b32 s3, s3, 16
              s_mul_i32 s3, s3, 14
              s_sub_u32 s27, s27, s3
              s_lshl_b32 s27, s27, 12
              s_mov_b32 s28, s25
              s_mov_b32 s29, s26
              s_add_u32 s25, s28, s27
              s_add_u32 s26, s29, s27""")
    if cfg.get("gprio"): a(f"s_setprio {cfg['gprio']}")
    a("s_waitcnt lgkmcnt(0)")
    a(f"s_mov_b32 s44, s18\ns_mov_b32 s45, s19\ns_add_u32 s48, s18, {WT_OFF}\ns_addc_u32 s49, s19, 0")
    ktok = {}; LQ = []
    RB = 80
    for ks in range(28):
        r = RB + (ks % NR) * 16; o = (ks & 1) * 2048
        for i, (rr, sd, so, oo) in enumerate(((r, 48, 26, o), (r + 8, 44, 25, o), (r + 4, 48, 26, o + 1024), (r + 12, 44, 25, o + 1024))):
            pre = "s_add_u32 s25, s25, 4096\ns_add_u32 s26, s26, 4096\n" if (i == 0 and ks and not (ks & 1)) else ""
            if R2 and pre: pre = "s_add_u32 s27, s27, 4096\ns_cmp_eq_u32 s27, 57344\ns_cselect_b32 s27, 0, s27\ns_add_u32 s25, s28, s27\ns_add_u32 s26, s29, s27\n"
            LQ.append((ks, i, pre + f"buffer_load_dwordx4 {q4(rr)}, v3, s[{sd}:{sd+3}], s{so} offen offset:{oo}"))
    st = {"cons": -1}
    def load1(limit):
        if not LQ: return False
        ks, i, t = LQ[0]
        if ks > st["cons"] + NR or ks > limit: return False
        LQ.pop(0); a(t); tok = vm.issue()
        if i == 3: ktok[ks] = tok
        return True
    while load1(D - 1): pass
    for x in L(PLW): a(x)
    AC = [16, 32, 48, 64]
    for ks in range(28):
        vm.wait(ktok[ks])
        if stamp and ks == 0: a("s_memtime s[94:95]")
        r = RB + (ks % NR) * 16
        for et in range(2):
            for tt in range(2):
                ac = AC[et * 2 + tt]
                c = "0" if ks == 0 else f"v[{ac}:{ac+15}]"
                a(f"{M32} v[{ac}:{ac+15}], {q4(r+4*et)}, {q4(r+8+4*tt)}, {c}")
                n = 0
                while n < 2 and load1(ks + D): n += 1
        st["cons"] = ks
        if ks == BK: a("s_barrier")
    if stamp: a("s_memtime s[96:97]")
    for ti in range(4):
        et, tt = ti >> 1, ti & 1
        for g in range(4):
            a(f"ds_write_b128 v5, {q4(AC[ti]+4*g)} offset:{tt*32*272 + et*128 + g*32}")
    a("s_waitcnt lgkmcnt(0)\ns_barrier")
    stamps()
    a("s_endpgm")
    a.label("K2_S")
    a(f"s_setprio {cfg.get('fprio', 3)} ; hz:barrier")
    a(f"""s_sub_u32 s29, s20, 4
          s_lshl_b32 s27, s23, 16
          s_lshl_b32 s3, s29, 14
          s_add_u32 s27, s27, s3
          s_mov_b32 s54, {Z_SZ}
          s_mov_b32 s55, 0x20000
          s_waitcnt lgkmcnt(0)
          s_add_u32 s52, s18, {Z_OFF}
          s_addc_u32 s53, s19, 0""")
    FB = 128
    for i in range(16):
        if i and i % 4 == 0: a("s_add_u32 s27, s27, 4096")
        a(f"buffer_load_dwordx4 {q4(FB+4*i)}, v3, s[52:55], s27 offen offset:{(i % 4)*1024}")
    srd(a, 64, 4, 5, 0x200000); srd(a, 68, 6, 7, 0x200000)
    a(f"""v_lshrrev_b32 v12, 2, v1
          v_and_b32 v13, 3, v1
          s_lshl_b32 s3, s23, 5
          s_and_b32 s31, s29, 1
          s_lshl_b32 s31, s31, 4
          s_add_u32 s3, s3, s31
          v_add_u32 v4, s3, v12
          s_bitcmp1_b32 s29, 1
          s_cselect_b32 s3, -1, 0
          s_cselect_b32 s31, 0x801, 0
          v_xor_b32 v4, s3, v4
          v_add_u32 v4, s31, v4
          v_mov_b32 v6, 0x400
          v_cmp_eq_u32 vcc, 0x800, v4
          v_cndmask_b32 v4, v4, v6, vcc
          v_lshlrev_b32 v4, 10, v4
          v_lshl_add_u32 v4, v13, 5, v4
          s_lshl_b32 s32, s24, 7
          buffer_load_dwordx4 v[192:195], v4, s[64:67], s32 offen
          buffer_load_dwordx4 v[196:199], v4, s[64:67], s32 offen offset:16
          s_setprio 0
          s_lshl_b32 s3, s29, 4
          v_add_u32 v6, s3, v12
          v_mul_u32_u24 v6, 272, v6
          v_lshl_add_u32 v6, v13, 6, v6
          v_add_u32 v7, {2*PL2}, v6
          v_add_u32 v8, {4*PL2}, v6
          v_add_u32 v9, {6*PL2}, v6""")
    for x in L(PLW): a(x)
    a("""s_lshl_b32 s3, s24, 6
         v_add_u32 v10, s3, v15
         v_add_u32 v11, 32, v10
         v_cvt_f32_u32 v10, v10
         v_cvt_f32_u32 v11, v11
         s_lshl_b32 s3, s29, 7
         v_lshl_add_u32 v14, v16, 3, s3
         v_cvt_f32_u32 v14, v14
         v_mul_f32 v10, 0x3b000000, v10
         v_mul_f32 v11, 0x3b000000, v11
         v_mul_f32 v12, v10, v14
         v_mul_f32 v13, v11, v14
         v_fract_f32 v12, v12
         v_fract_f32 v13, v13
         s_cmp_eq_u32 s23, 0
         s_cselect_b32 s30, 1, 0
         s_mov_b32 s31, s30""")
    P, Q, R = [16, 32], [48, 64], [80, 96]
    TC = [200, 224]
    n = 0
    for ks in range(8):
        for et in range(2):
            t = TC[n & 1]; n += 1
            for j in range(8): a(f"v_fmamk_f32 v{t+j}, v{10+et}, {fbits(float(16*ks+j))}, v{12+et}")
            if cfg.get("fract", 0):
                for j in range(8): a(f"v_fract_f32 v{t+j}, v{t+j}")
            for j in range(8): a(f"v_sin_f32 v{t+8+j}, v{t+j}")
            for j in range(8): a(f"v_cos_f32 v{t+j}, v{t+j}")
            for i in range(4): a(f"v_cvt_pk_bf16_f32 v{t+20+i}, v{t+8+2*i}, v{t+9+2*i}")
            for i in range(4): a(f"v_cvt_pk_bf16_f32 v{t+16+i}, v{t+2*i}, v{t+1+2*i}")
            if et == 0: a(f"s_waitcnt vmcnt({2 + 14 - 2*ks})")
            acc = lambda r: "0" if ks == 0 else f"v[{r}:{r+15}]"
            a(f"{M32} v[{Q[et]}:{Q[et]+15}], {q4(t+20)}, {q4(FB+8*ks+4)}, {acc(Q[et])}")
            a(f"{M32} v[{P[et]}:{P[et]+15}], {q4(t+16)}, {q4(FB+8*ks)}, {acc(P[et])}")
            a(f"s_cbranch_scc0 K2_NR{n}")
            a(f"{M32} v[{R[et]}:{R[et]+15}], {q4(t+16)}, {q4(FB+8*ks+4)}, {acc(R[et])}")
            a.label(f"K2_NR{n}")
    if stamp: a("s_memtime s[94:95]")
    a("s_nop 7\ns_nop 7")
    for et in range(2):
        for i in range(16):
            a(f"v_cndmask_b32 v{Q[et]+i}, v{Q[et]+i}, 0, s[30:31]")
            a(f"v_cndmask_b32 v{R[et]+i}, v{P[et]+i}, v{R[et]+i}, s[30:31]")
        for i in range(16):
            a(f"v_add_f32 v{P[et]+i}, v{P[et]+i}, v{Q[et]+i}")
            a(f"v_sub_f32 v{R[et]+i}, v{R[et]+i}, v{Q[et]+i}")
        for tt, b in ((0, P[et]), (1, R[et])):
            for g in range(4):
                a(f"ds_write_b128 v5, {q4(b+4*g)} offset:{tt*32*272 + et*128 + g*32}")
    a("s_waitcnt lgkmcnt(0)\ns_barrier")
    if stamp: a("s_memtime s[86:87]")
    lg = Cnt(a, "lgkmcnt", 15)
    S = 16
    def red(base, first):
        tok = []
        for p in range(4):
            for q in range(4):
                a(f"ds_read_b128 {q4(32+(p*4+q)*4)}, v{base + (p >> 1)} offset:{(p & 1)*PL2 + q*16}"); tok.append(lg.issue())
                if lg.n - lg.done > 15: raise Exception("lgkm overflow")
            if p == 2 or p == 3: pass
        return tok
    a("s_waitcnt vmcnt(0)")
    for i in range(8): a(f"v_lshlrev_b32 v{S+2*i}, 16, v{192+i}\nv_and_b32 v{S+1+2*i}, 0xffff0000, v{192+i}")
    def reduce4(base):
        toks = []
        for p in range(4):
            for q in range(4):
                if lg.n - lg.done >= 15: lg.wait(lg.n - 11)
                a(f"ds_read_b128 {q4(32+(p*4+q)*4)}, v{base + (p >> 1)} offset:{(p & 1)*PL2 + q*16}"); toks.append(lg.issue())
        d2 = lambda r: f"v[{r}:{r+1}]"
        lg.wait(toks[7])
        for i in range(0, 16, 2): a(f"v_pk_add_f32 {d2(32+i)}, {d2(32+i)}, {d2(48+i)}")
        for i in range(0, 16, 2): a(f"v_pk_add_f32 {d2(S+i)}, {d2(S+i)}, {d2(32+i)}")
        lg.wait(toks[15])
        for i in range(0, 16, 2): a(f"v_pk_add_f32 {d2(64+i)}, {d2(64+i)}, {d2(80+i)}")
        for i in range(0, 16, 2): a(f"v_pk_add_f32 {d2(S+i)}, {d2(S+i)}, {d2(64+i)}")
    reduce4(8)
    if stamp: a("s_memtime s[88:89]")
    a("s_barrier")
    if stamp: a("s_memtime s[96:97]")
    reduce4(6)
    for i in range(8): a(f"v_cvt_pk_bf16_f32 v{96+i}, v{S+2*i}, v{S+1+2*i}")
    a("buffer_store_dwordx4 v[96:99], v4, s[68:71], s32 offen\nbuffer_store_dwordx4 v[100:103], v4, s[68:71], s32 offen offset:16")
    if cfg.get("k2delay"): a(f"s_sleep {cfg['k2delay']}")
    stamps()
    a.label("K2_END")
    lines, n = hz.fix(a.l)
    return "\n".join(lines), 256

HEADER = open("parallel_sum__spectral_fnet__geglu_ffn__prompt.s.ref").read().split("; Override launch")[0]

def build(cfg):
    k1, v1 = gen_k1(cfg)
    k2, v2 = gen_k2(cfg)
    out = HEADER
    out += f"; @launch kernel=fnet_g1_kernel grid=(256,1,1) block=(512,1,1) lds={K1_LDS}\n"
    out += f"; @launch kernel=fnet_g2_kernel grid=(256,1,1) block=(512,1,1) lds={K2_LDS}\n"
    out += HDR + kern("fnet_g1_kernel", k1) + kern("fnet_g2_kernel", k2)
    out += '.section .rodata,"a"\n' + kd("fnet_g1_kernel", v1, 102, 244) + kd("fnet_g2_kernel", v2, 102, 256)
    return out

if __name__ == "__main__":
    cfg = {}
    for kv in sys.argv[2:]:
        k, v = kv.split("=")
        cfg[k] = int(v) if v.lstrip("-").isdigit() else v
    open(sys.argv[1], "w").write(build(cfg))
```
